```python
import torch

def _softmax(x, axis=-1):
    return torch.softmax(x, dim=axis)

def _gelu(x):
    return torch.nn.functional.gelu(x, approximate='tanh')

def _silu(x):
    return torch.nn.functional.silu(x)

def _sigmoid(x):
    return torch.sigmoid(x)

def _layernorm(x, axis=-1, eps=1e-05):
    m = x.mean(dim=axis, keepdim=True)
    v = x.var(dim=axis, keepdim=True, unbiased=False)
    return (x - m) / torch.sqrt(v + eps)

def _scatter_add(tgt, idx, src, axis=0):
    return tgt.clone().index_add_(axis, idx, src)

def _segment_sum(src, seg, n):
    out = torch.zeros((n,) + src.shape[1:], dtype=src.dtype)
    return out.index_add_(0, seg, src)

def _pad(x, pw):
    flat = tuple((v for pair in reversed(pw) for v in pair))
    return torch.nn.functional.pad(x, flat)
kernel_name = 'adaLN_cond__linear_kernel_hedgehog__geglu_ffn__prompt'

def setup_inputs():

    _w = lambda a: (lambda t: t.to(torch.bfloat16) if t.is_floating_point() else t)(torch.as_tensor(a))

    def _A_setup():
        B, S, D, H = (1, 2048, 640, 32)
        Dh = D // H
        return {'x': _w((lambda *s: torch.randn(*s, dtype=torch.bfloat16) * 0.05)(B, S, D)), 'wqkv': _w((lambda *s: torch.randn(*s, dtype=torch.bfloat16) * 0.4)(D, 3 * D)), 'w_phi': _w((lambda *s: torch.randn(*s, dtype=torch.bfloat16) * 0.4)(H, Dh, Dh) * Dh ** (-0.5)), 'wo': _w((lambda *s: torch.randn(*s, dtype=torch.bfloat16) * 0.05)(D, D))}
    _A_in = _A_setup()

    def _B_setup():
        B, S, D, F = (1, 2048, 640, 1728)
        return {'x': _w((lambda *s: torch.randn(*s, dtype=torch.bfloat16) * 0.05)(B, S, D)), 'w_gate': _w((lambda *s: torch.randn(*s, dtype=torch.bfloat16) * 0.05)(D, F)), 'w_up': _w((lambda *s: torch.randn(*s, dtype=torch.bfloat16) * 0.05)(D, F)), 'w_down': _w((lambda *s: torch.randn(*s, dtype=torch.bfloat16) * 0.05)(F, D))}
    _B_in = _B_setup()
    return {'A_x': _A_in['x'], 'A_wqkv': _A_in['wqkv'], 'A_w_phi': _A_in['w_phi'], 'A_wo': _A_in['wo'], 'B_x': _B_in['x'], 'B_w_gate': _B_in['w_gate'], 'B_w_up': _B_in['w_up'], 'B_w_down': _B_in['w_down'], 'c': _w((lambda *s: torch.randn(*s, dtype=torch.bfloat16) * 0.1)(1, 640) * 8.0), 'w_mod': _w((lambda *s: torch.randn(*s, dtype=torch.bfloat16) * 0.1)(640, 6 * 640) * 640 ** (-0.5) * 8.0)}

def reference(A_x, A_wqkv, A_w_phi, A_wo, B_x, B_w_gate, B_w_up, B_w_down, c, w_mod):

    def _A_ref(x, wqkv, w_phi, wo):
        B, S, D = x.shape
        H = 32
        Dh = D // H
        qkv = (lambda x, *d: x.permute(*d))((x @ wqkv).reshape(B, S, 3, H, Dh), 2, 0, 3, 1, 4)
        q, k, v = (qkv[0], qkv[1], qkv[2])
        pq = torch.einsum('bhsd,hdf->bhsf', q, w_phi)
        pk = torch.einsum('bhsd,hdf->bhsf', k, w_phi)
        phi_q = torch.concatenate([_softmax(pq, axis=-1), _softmax(-pq, axis=-1)], axis=-1)
        phi_k = torch.concatenate([_softmax(pk, axis=-1), _softmax(-pk, axis=-1)], axis=-1)
        kv = torch.einsum('bhsf,bhsd->bhfd', phi_k, v)
        z = torch.einsum('bhsf->bhf', phi_k)
        num = torch.einsum('bhqf,bhfd->bhqd', phi_q, kv)
        den = torch.einsum('bhqf,bhf->bhq', phi_q, z)[..., None] + 1e-06
        o = num / den
        return (lambda x, *d: x.permute(*d))(o, 0, 2, 1, 3).reshape(B, S, D) @ wo

    def _B_ref(x, w_gate, w_up, w_down):
        return _gelu(x @ w_gate) * (x @ w_up) @ w_down
    x = A_x
    mod = (_silu(c) @ w_mod).reshape(c.shape[0], 6, 1, -1)
    sa, ca, ga, sb, cb, gb = (mod[:, 0].clone(), mod[:, 1].clone(), mod[:, 2].clone(), mod[:, 3].clone(), mod[:, 4].clone(), mod[:, 5].clone())
    h = _layernorm(x, axis=-1) * (1 + ca) + sa
    x = x + ga * _A_ref(h, A_wqkv, A_w_phi, A_wo)
    h = _layernorm(x, axis=-1) * (1 + cb) + sb
    x = x + gb * _B_ref(h, B_w_gate, B_w_up, B_w_down)
    return x
```

```python
import re

REG_RE = re.compile(r'\b([vsa])(?:\[(\d+):(\d+)\]|(\d+)\b)')

def regs_of(tok):
    out = set()
    tok = tok.strip()
    if tok in ('vcc',): return {('s', 106), ('s', 107)}
    if tok == 'vcc_lo': return {('s', 106)}
    if tok == 'vcc_hi': return {('s', 107)}
    if tok == 'exec': return {('x', 0)}
    if tok == 'm0': return {('m', 0)}
    for m in REG_RE.finditer(tok):
        k = m.group(1)
        if m.group(2) is not None:
            for i in range(int(m.group(2)), int(m.group(3)) + 1): out.add((k, i))
        else:
            out.add((k, int(m.group(4))))
    return out

TRANS = ('v_exp_f32', 'v_log_f32', 'v_rcp_f32', 'v_rsq_f32', 'v_sqrt_f32', 'v_sin_f32', 'v_cos_f32')

class Ins:
    __slots__ = ('text', 'op', 'dst', 'src', 'kind', 'srcC', 'srcAB', 'passes', 'data', 'dpp', 'sregsrc')
    def __init__(self, text):
        self.text = text
        body = text.split(';')[0].strip()
        parts = body.split(None, 1)
        self.op = op = parts[0]
        ops = []
        mods = ''
        if len(parts) > 1:
            raw = parts[1]
            cur = ''; depth = 0
            for ch in raw:
                if ch == '[': depth += 1
                if ch == ']': depth -= 1
                if ch == ',' and depth == 0: ops.append(cur.strip()); cur = ''
                else: cur += ch
            if cur.strip(): ops.append(cur.strip())
        if ops:
            last = ops[-1].split(None, 1)
            ops[-1] = last[0]
            mods = last[1] if len(last) > 1 else ''
        self.dst = set(); self.src = set(); self.srcC = set(); self.srcAB = set(); self.passes = 0; self.data = set()
        self.dpp = ('dpp' in op) or ('row_' in mods) or ('quad_perm' in mods)
        R = regs_of
        if op.startswith('v_mfma'):
            self.kind = 'mfma'
            self.dst = R(ops[0]); self.srcAB = R(ops[1]) | R(ops[2]); self.srcC = R(ops[3]); self.src = self.srcAB | self.srcC
            self.passes = 8 if '32x32' in op else 4
        elif op.startswith('buffer_load') or op.startswith('global_load'):
            self.kind = 'vmem'
            if ' lds' in (' ' + mods) or op.startswith('global_load_lds'):
                for o in ops: self.src |= R(o)
                self.src.add(('m', 0))
            else:
                self.dst = R(ops[0])
                for o in ops[1:]: self.src |= R(o)
        elif op.startswith('buffer_store') or op.startswith('global_store') or op.startswith('buffer_atomic') or op.startswith('global_atomic'):
            self.kind = 'vmem'
            for o in ops: self.src |= R(o)
            if op.startswith('buffer_store') and ('x3' in op or 'x4' in op): self.data = R(ops[0])
            if op.startswith('global_store') and ('x3' in op or 'x4' in op): self.data = R(ops[1])
            if 'atomic' in op and 'sc0' in mods: self.dst = R(ops[0])
        elif op.startswith('ds_read') or op.startswith('ds_bpermute') or op.startswith('ds_swizzle') or op.startswith('ds_permute'):
            self.kind = 'ds'
            self.dst = R(ops[0])
            for o in ops[1:]: self.src |= R(o)
        elif op.startswith('ds_'):
            self.kind = 'ds'
            for o in ops: self.src |= R(o)
        elif op.startswith('v_cmp'):
            self.kind = 'valu'
            self.dst = R(ops[0])
            if op.startswith('v_cmpx'): self.dst.add(('x', 0))
            for o in ops[1:]: self.src |= R(o)
        elif op.startswith('v_permlane') and 'swap' in op:
            self.kind = 'valu'
            self.dst = R(ops[0]) | R(ops[1]); self.src = set(self.dst)
        elif op.startswith('v_'):
            self.kind = 'valu'
            self.dst = R(ops[0])
            rest = ops[1:]
            if op.startswith(('v_add_co', 'v_sub_co', 'v_addc_co', 'v_subb_co', 'v_subrev_co')):
                self.dst |= R(ops[1]); rest = ops[2:]
            for o in rest: self.src |= R(o)
            if op.startswith(('v_fmac', 'v_pk_fmac', 'v_dot2c')): self.src |= R(ops[0])
            if op.startswith('v_cndmask') and len(ops) == 3: self.src |= R('vcc')
            if self.dpp: self.src |= R(ops[0])
        elif op.startswith('s_load') or op.startswith('s_memtime') or op.startswith('s_memrealtime') or op.startswith('s_buffer_load'):
            self.kind = 'smem'
            self.dst = R(ops[0])
            for o in ops[1:]: self.src |= R(o)
        elif op in ('s_waitcnt', 's_barrier', 's_nop', 's_endpgm', 's_setprio', 's_sleep') or op.startswith('s_cbranch') or op == 's_branch':
            self.kind = 'ctl'
        elif op.startswith('s_cmp'):
            self.kind = 'salu'
            for o in ops: self.src |= R(o)
        elif op.startswith('s_'):
            self.kind = 'salu'
            self.dst = R(ops[0])
            for o in ops[1:]: self.src |= R(o)
            if 'saveexec' in op: self.dst.add(('x', 0)); self.src.add(('x', 0))
        else:
            raise ValueError('unknown instruction: ' + text)

    def states(self):
        if self.op == 's_nop':
            return int(self.text.split()[1], 0) + 1
        return 1

def need(p, c):
    n = 0
    vd = {r for r in p.dst if r[0] in 'va'}
    sd = {r for r in p.dst if r[0] == 's'}
    if p.kind == 'valu':
        if c.kind == 'mfma' and (vd & c.src): n = max(n, 2)
        if c.kind == 'valu' and c.dpp and (vd & c.src): n = max(n, 2)
        if c.op.startswith('v_permlane') and (vd & c.src): n = max(n, 2)
        if c.op.startswith(('v_readlane', 'v_readfirstlane')) and (vd & c.src): n = max(n, 1)
        if p.op.startswith(TRANS) and c.kind in ('valu', 'mfma') and (vd & (c.src | c.dst)): n = max(n, 1 if c.kind == 'valu' else 2)
        if p.op.startswith(TRANS) and c.kind in ('vmem', 'ds') and (vd & c.src): n = max(n, 1)
        if sd:
            if c.kind == 'valu' and (sd & c.src): n = max(n, 4 if c.op.startswith(('v_readlane', 'v_writelane')) else 2)
            if c.kind == 'vmem' and (sd & c.src): n = max(n, 5)
            if c.kind in ('salu', 'smem') and (sd & c.src): n = max(n, 1)
        if ('x', 0) in p.dst:
            if c.kind == 'mfma': n = max(n, 4)
            if c.dpp: n = max(n, 5)
            if c.op.startswith(('v_readlane', 'v_readfirstlane', 'v_writelane', 'v_permlane')): n = max(n, 4)
    if p.kind == 'salu' and ('m', 0) in p.dst and ('m', 0) in c.src and c.kind in ('vmem', 'ds'): n = max(n, 1)
    if p.kind == 'mfma':
        P = p.passes
        full = {4: 8, 8: 12}[P]
        if c.kind == 'mfma':
            if vd & c.srcAB: n = max(n, full)
            if vd & c.srcC:
                if not (c.srcC == p.dst and c.passes == P): n = max(n, {4: 6, 8: 10}[P])
            elif vd & c.dst: n = max(n, full)
        elif c.kind in ('valu', 'vmem', 'ds'):
            if vd & (c.src | c.dst): n = max(n, full)
        if c.kind == 'valu' and (p.srcC & c.dst): n = max(n, {4: 3, 8: 7}[P])
    if p.kind == 'vmem' and p.data:
        if p.data & c.dst: n = max(n, 2)
    return n

class Asm:
    def __init__(self):
        self.lines = []
        self.hist = []
    def raw(self, s):
        self.lines.append(s)
    def label(self, name):
        self.flush()
        self.lines.append(name + ':')
        self.hist = []
    def flush(self):
        worst = 0; dist = 0
        for p in reversed(self.hist[-16:]):
            w = 0
            if p.kind == 'mfma': w = {4: 8, 8: 12}[p.passes]
            elif p.kind == 'valu': w = 5 if any(r[0] in 'sx' for r in p.dst) else 2
            elif p.kind == 'vmem' and p.data: w = 2
            elif p.kind == 'salu' and ('m', 0) in p.dst: w = 1
            worst = max(worst, w - dist)
            dist += p.states()
        self._nop(worst)
    def _nop(self, n):
        while n > 0:
            k = min(n, 8)
            i = Ins(f's_nop {k-1}'); self.lines.append(i); self.hist.append(i); n -= k
    def __call__(self, text):
        for t in text.strip().split('\n'):
            t = t.strip()
            if not t or t.startswith(';'):
                if t: self.lines.append('    ' + t)
                continue
            c = Ins(t)
            if c.op.startswith('s_cbranch') or c.op == 's_branch':
                self.flush()
            dist = 0; pad = 0
            for p in reversed(self.hist[-24:]):
                pad = max(pad, need(p, c) - dist)
                dist += p.states()
                if dist > 20: break
            self._nop(pad)
            self.lines.append(c); self.hist.append(c)
    def text(self):
        return '\n'.join(l if isinstance(l, str) else '    ' + l.text for l in self.lines) + '\n'
    def max_regs(self, start=0):
        mv = ms = 0
        for l in self.lines[start:]:
            if isinstance(l, str): continue
            for k, n in l.dst | l.src:
                if k == 'v': mv = max(mv, n + 1)
                if k == 's' and n < 102: ms = max(ms, n + 1)
        return mv, ms

def v(i, n=1): return f'v{i}' if n == 1 else f'v[{i}:{i+n-1}]'
def s(i, n=1): return f's{i}' if n == 1 else f's[{i}:{i+n-1}]'
```

```python
import sys
sys.path.insert(0, 'gen')
from asmlib import *

MODP = 0x0
MODF = 0x10000
MODB = 0x14000
ST   = 0x20000
CSBS = 0x40000
KVP  = 0x80000
H1   = 0x280000
WQKV = 0x500000
PHIQ = 0x780000
O_   = 0xD00000
WO   = 0xF80000
X1   = 0x1080000
WGU  = 0x1300000
ACT  = 0x1780000
WD   = 0x1E80000
WS_SIZE = 0x10000000
OOB = 0x40000000
KA = dict(x=0, wqkv=8, wphi=16, wo=24, bx=32, wg=40, wu=48, wd=56, c=64, wmod=72, out=80, dbg=88, ws=96)
SZ = dict(x=2621440, wqkv=2457600, wphi=25600, wo=819200, wg=2211840, wu=2211840, wd=2211840, c=1280, wmod=4915200, out=2621440, ws=WS_SIZE)
LOG2E = 1.4426950408889634

import struct
def f2u(x): return '0x%08x' % struct.unpack('<I', struct.pack('<f', x))[0]

INSTR = False
TS = 0x4000000
KIDX = [0]
class IAsm(Asm):
    kidx = 0
    def __call__(self, text):
        if INSTR and text.strip() == 's_endpgm':
            c = super().__call__
            c('s_waitcnt vmcnt(0) lgkmcnt(0)')
            c('s_memrealtime s[92:93]'); c('s_load_dwordx2 s[94:95], s[0:1], 96')
            c(f's_add_u32 s97, s2, {self.kidx * 512}'); c('s_lshl_b32 s97, s97, 3'); c('s_add_u32 s97, s97, s96'); c('s_lshl_b32 s97, s97, 4')
            c(f's_add_u32 s97, s97, {TS}')
            c('s_mov_b64 exec, 1')
            c('s_waitcnt lgkmcnt(0)')
            c('v_mov_b32 v0, s97'); c('v_mov_b32 v4, s90'); c('v_mov_b32 v5, s91'); c('v_mov_b32 v6, s92'); c('v_mov_b32 v7, s93')
            c('global_store_dwordx4 v0, v[4:7], s[94:95]')
            c('s_memtime s[92:93]'); c('s_waitcnt lgkmcnt(0)')
            c('s_lshl_b32 s97, s97, 2'); c(f's_sub_u32 s97, s97, {3*TS - 0x1000000}')
            c('v_mov_b32 v0, s97')
            for q in range(3):
                for j in range(4): c(f'v_mov_b32 v{4+j}, s{70+2*(4*q+j)}')
                c(f'global_store_dwordx4 v0, v[4:7], s[94:95] offset:{16*q}')
        super().__call__(text)
    def stamp(self, i):
        if INSTR:
            c = super().__call__
            c(f's_memtime s[{70+2*i}:{71+2*i}]'); c('s_waitcnt lgkmcnt(0)')
class Kernel:
    def __init__(self, name, grid, block, lds):
        self.name, self.grid, self.block, self.lds = name, grid, block, lds
        self.a = IAsm()
        self.a.kidx = KIDX[0]; KIDX[0] += 1
        if INSTR:
            self.a('s_memrealtime s[90:91]'); self.a('v_lshrrev_b32 v1, 6, v0'); self.a('v_readfirstlane_b32 s96, v1')
            for i in range(1, 10): self.a(f's_mov_b32 s{70+2*i}, 0')
            self.a.stamp(0)
    def srd(self, names_regs):
        a = self.a
        for n, r in names_regs:
            a(f's_load_dwordx2 s[{r}:{r+1}], s[0:1], {KA[n]}')
        for n, r in names_regs:
            a(f's_mov_b32 s{r+2}, {SZ[n]}')
            a(f's_mov_b32 s{r+3}, 0x20000')
    def text(self):
        return f'.globl {self.name}\n.p2align 8\n.type {self.name},@function\n{self.name}:\n' + self.a.text()
    def desc(self):
        mv, ms = self.a.max_regs()
        mv = max(8, (mv + 7) // 8 * 8)
        return f'''.p2align 6
.amdhsa_kernel {self.name}
  .amdhsa_next_free_vgpr {mv}
  .amdhsa_next_free_sgpr {max(ms, 16)}
  .amdhsa_accum_offset {min(256, mv)}
  .amdhsa_group_segment_fixed_size 0
  .amdhsa_kernarg_size 104
  .amdhsa_user_sgpr_count 2
  .amdhsa_user_sgpr_kernarg_segment_ptr 1
  .amdhsa_system_sgpr_workgroup_id_x 1
.end_amdhsa_kernel
'''

def unpack(a, dlo, dhi, src):
    a(f'v_lshlrev_b32 v{dlo}, 16, v{src}')
    a(f'v_and_b32 v{dhi}, 0xffff0000, v{src}')

def ident_frags(a, vd, vl15, vg, tmp, limit=None):
    for c2 in range(2):
        a(f'v_lshlrev_b32 v{tmp}, 3, v{vg}')
        a(f'v_sub_u32 v{tmp}, v{vl15}, v{tmp}')
        if c2: a(f'v_add_u32 v{tmp}, 16, v{tmp}')
        if limit is not None and c2 == 1:
            a(f'v_cmp_gt_u32 vcc, {limit-16}, v{vl15}')
            a(f'v_cndmask_b32 v{tmp}, 64, v{tmp}, vcc')
        for jj in range(4):
            d = vd + 4 * c2 + jj
            a(f'v_mov_b32 v{tmp+1}, 0x3f80')
            a(f'v_cmp_eq_u32 vcc, {2*jj}, v{tmp}')
            a(f'v_cndmask_b32 v{d}, 0, v{tmp+1}, vcc')
            a(f'v_mov_b32 v{tmp+1}, 0x3f800000')
            a(f'v_cmp_eq_u32 vcc, {2*jj+1}, v{tmp}')
            a(f'v_cndmask_b32 v{d}, v{d}, v{tmp+1}, vcc')
```

```python
import sys
sys.path.insert(0, 'gen')
import common as C
from common import *

FL  = 0x60000
F2, F3, F4, F5, FG, FD = FL, FL + 0x800, FL + 0x1000, FL + 0x1400, FL + 0x1800, FL + 0x2800
CSP = 0x2200000
SPIN_MAX = 400000

class MAsm(Asm):
    kidx = 0
    def __call__(self, text):
        if C.INSTR and text.strip() == 's_endpgm':
            c = super().__call__
            c('s_waitcnt vmcnt(0) lgkmcnt(0)')
            c('s_memrealtime s[98:99]'); c('s_load_dwordx2 s[94:95], s[0:1], 96')
            c(f's_add_u32 s97, s2, {self.kidx * 1024}'); c('s_lshl_b32 s97, s97, 3'); c('s_add_u32 s97, s97, s96'); c('s_lshl_b32 s97, s97, 7')
            c(f's_add_u32 s97, s97, {TS}')
            c('s_mov_b64 exec, 1')
            c('s_waitcnt lgkmcnt(0)'); c('s_mov_b32 s93, s98')
            c('v_mov_b32 v0, s97')
            for q in range(6):
                for j in range(4): c(f'v_mov_b32 v{4+j}, s{70+4*q+j}')
                c(f'global_store_dwordx4 v0, v[4:7], s[94:95] offset:{16*q}')
        super().__call__(text)
    def stamp(self, i):
        if C.INSTR:
            c = super().__call__
            c('s_memrealtime s[98:99]'); c('s_waitcnt lgkmcnt(0)'); c(f's_mov_b32 s{70+i}, s98')
class MKernel(Kernel):
    def __init__(self, name, grid, block, lds):
        self.name, self.grid, self.block, self.lds = name, grid, block, lds
        self.a = MAsm(); self.a.kidx = C.KIDX[0]; C.KIDX[0] += 1
        if C.INSTR:
            self.a('v_lshrrev_b32 v1, 6, v0'); self.a('v_readfirstlane_b32 s96, v1')
            for i in range(1, 24): self.a(f's_mov_b32 s{70+i}, 0')
            self.a.stamp(0)

def sel_frags(a, vd, vsrc, vg, tmp, n, step, one='bf16'):
    a(f'v_lshlrev_b32 v{tmp}, 3, v{vg}')
    a(f'v_sub_u32 v{tmp}, v{vsrc}, v{tmp}')
    a(f'v_mov_b32 v{tmp+1}, 0x3f80'); a(f'v_mov_b32 v{tmp+2}, 0x3f800000')
    for q in range(n):
        for jj in range(4):
            d = vd + 4 * q + jj
            a(f'v_cmp_eq_u32 vcc, {2*jj - q*step}, v{tmp}')
            a(f'v_cmp_eq_u32 s[56:57], {2*jj + 1 - q*step}, v{tmp}')
            a(f'v_cndmask_b32 v{d}, 0, v{tmp+1}, vcc')
            a(f'v_cndmask_b32 v{d}, v{d}, v{tmp+2}, s[56:57]')

def dpp_sum16(a, r):
    for sh in (8, 4, 2, 1):
        a(f'v_add_f32_dpp v{r}, v{r}, v{r} row_ror:{sh} row_mask:0xf bank_mask:0xf')

def sum4_round(a, b, add=None):
    for j in range(4): a(f'v_add_f32 v{b+j}, v{b+j}, v{b+4+j}')
    for j in range(4): a(f'v_add_f32 v{b+8+j}, v{b+8+j}, v{b+12+j}')
    for j in range(4): a(f'v_add_f32 v{b+j}, v{b+j}, v{b+8+j}')
    for h in range(2): a(f'v_cvt_pk_bf16_f32 v{b+4+h}, v{b+2*h}, v{b+2*h+1}')
    for h in range(2): unpack(a, b + 2 * h, b + 2 * h + 1, b + 4 + h)
    if add is not None:
        for j in range(4): a(f'v_add_f32 v{b+j}, {add}, v{b+j}')
        for h in range(2): a(f'v_cvt_pk_bf16_f32 v{b+4+h}, v{b+2*h}, v{b+2*h+1}')
        for h in range(2): unpack(a, b + 2 * h, b + 2 * h + 1, b + 4 + h)

N_FOLD, N_LN, N_MOD = 120, 128, 240
def k1():
    B_LN = N_FOLD; B_MOD = B_LN + N_LN; B_Z = B_MOD + N_MOD; NB = B_Z + 1
    K = MKernel('k1_kernel', NB, 256, 16384); a = K.a
    a(f's_cmp_ge_u32 s2, {NB}'); a('s_cbranch_scc1 L1_end')
    a(f's_cmp_ge_u32 s2, {B_MOD}'); a('s_cbranch_scc0 L1_notmod')
    K.srd([('wmod', 4), ('c', 8), ('ws', 12)])
    a(f's_cmp_eq_u32 s2, {B_Z}'); a('s_cbranch_scc1 L1_zero')
    a(f's_sub_u32 s23, s2, {B_MOD}')
    a('s_mul_i32 s24, s23, 1093'); a('s_lshr_b32 s24, s24, 16')
    a('s_mul_i32 s25, s24, 60'); a('s_sub_u32 s25, s23, s25')
    a('v_and_b32 v1, 7, v0'); a('v_lshrrev_b32 v2, 3, v0')
    a('v_mul_u32_u24 v3, 7680, v2'); a('v_lshl_add_u32 v3, v1, 4, v3')
    a('v_lshlrev_b32 v4, 1, v2')
    a('s_mul_i32 s26, s24, 1228800'); a('s_lshl_b32 s27, s25, 7'); a('s_add_u32 s26, s26, s27')
    a('s_mul_i32 s27, s24, 320')
    a('s_waitcnt lgkmcnt(0)')
    for i in range(5): a(f'buffer_load_ushort v{10+i}, v4, s[8:11], s27 offen offset:{64*i}')
    for i in range(5):
        a(f'buffer_load_dwordx4 v[{16+4*i}:{19+4*i}], v3, s[4:7], s26 offen')
        if i < 4: a('s_add_u32 s26, s26, 245760')
    for j in range(8): a(f'v_mov_b32 v{40+j}, 0')
    a('v_lshlrev_b32 v5, 8, v2'); a('v_lshl_add_u32 v5, v1, 5, v5')
    a('s_waitcnt vmcnt(5)')
    for i in range(5): a(f'v_lshlrev_b32 v{10+i}, 16, v{10+i}')
    for i in range(5): a(f'v_mul_f32 v{50+i}, {f2u(-LOG2E)}, v{10+i}')
    for i in range(5): a(f'v_exp_f32 v{50+i}, v{50+i}')
    for i in range(5): a(f'v_add_f32 v{50+i}, 1.0, v{50+i}')
    for i in range(5): a(f'v_rcp_f32 v{50+i}, v{50+i}')
    for i in range(5): a(f'v_mul_f32 v{10+i}, v{10+i}, v{50+i}')
    for i in range(5): a(f'v_cvt_pk_bf16_f32 v{10+i}, v{10+i}, v{10+i}')
    for i in range(5): a(f'v_lshlrev_b32 v{10+i}, 16, v{10+i}')
    for i in range(5):
        a(f's_waitcnt vmcnt({4-i})')
        for j in range(4): unpack(a, 56 + 2 * j, 57 + 2 * j, 16 + 4 * i + j)
        for j in range(8): a(f'v_fmac_f32 v{40+j}, v{56+j}, v{10+i}')
    a('ds_write_b128 v5, v[40:43]'); a('ds_write_b128 v5, v[44:47] offset:16')
    a('s_mul_i32 s26, s24, 15360'); a('s_lshl_b32 s27, s25, 8'); a('s_add_u32 s26, s26, s27')
    a('v_readfirstlane_b32 s28, v0')
    a('s_waitcnt lgkmcnt(0)'); a('s_barrier')
    a('s_cmp_ge_u32 s28, 64'); a('s_cbranch_scc1 L1_end')
    a('v_lshlrev_b32 v5, 2, v0')
    for r in range(32): a(f'ds_read_b32 v{10+r}, v5 offset:{256*r}')
    a('s_waitcnt lgkmcnt(0)')
    for st_ in (16, 8, 4, 2, 1):
        for r in range(st_): a(f'v_add_f32 v{10+r}, v{10+r}, v{10+r+st_}')
    a(f'buffer_store_dword v10, v5, s[12:15], s26 offen offset:{MODP}')
    a('s_endpgm')
    a.label('L1_zero')
    a('v_lshlrev_b32 v1, 4, v0')
    for j in range(4): a(f'v_mov_b32 v{4+j}, 0')
    a('s_waitcnt lgkmcnt(0)')
    for q in range(3):
        a(f's_mov_b32 s20, {FL + 4096*q}'); a('buffer_store_dwordx4 v[4:7], v1, s[12:15], s20 offen')
    a('s_endpgm')
    a.label('L1_notmod')
    a(f's_cmp_ge_u32 s2, {B_LN}'); a('s_cbranch_scc0 L1_fold')
    K.srd([('x', 4), ('ws', 8)])
    a('v_and_b32 v1, 15, v0'); a('v_lshrrev_b32 v2, 4, v0')
    a('v_mul_u32_u24 v3, 1280, v2'); a('v_lshl_add_u32 v3, v1, 4, v3')
    a(f's_sub_u32 s12, s2, {B_LN}'); a('s_mul_i32 s12, s12, 20480')
    a('s_waitcnt lgkmcnt(0)')
    for i in range(5): a(f'buffer_load_dwordx4 v[{20+4*i}:{23+4*i}], v3, s[4:7], s12 offen offset:{256*i}')
    a('v_lshrrev_b32 v10, 2, v1'); a('v_lshlrev_b32 v10, 10, v10'); a('v_and_b32 v11, 3, v1')
    a('v_lshl_add_u32 v10, v11, 8, v10'); a('v_lshl_add_u32 v10, v2, 4, v10')
    a(f's_add_u32 s12, s12, {H1}')
    for i in range(5):
        a(f's_waitcnt vmcnt({4-i})')
        for j in range(4): unpack(a, 80 + 8 * i + 2 * j, 81 + 8 * i + 2 * j, 20 + 4 * i + j)
        if i == 0:
            for j in range(4): a(f'v_add_f32 v{4+j}, v{80+j}, v{84+j}')
        else:
            for j in range(8): a(f'v_add_f32 v{4+(j&3)}, v{4+(j&3)}, v{80+8*i+j}')
    a('v_add_f32 v4, v4, v5'); a('v_add_f32 v6, v6, v7'); a('v_add_f32 v4, v4, v6')
    dpp_sum16(a, 4)
    a(f'v_mul_f32 v4, {f2u(1/640)}, v4')
    for i in range(40): a(f'v_sub_f32 v{80+i}, v{80+i}, v4')
    for j in range(4): a(f'v_mul_f32 v{12+j}, v{80+j}, v{80+j}')
    for i in range(4, 40): a(f'v_fmac_f32 v{12+(i&3)}, v{80+i}, v{80+i}')
    a('v_add_f32 v12, v12, v13'); a('v_add_f32 v14, v14, v15'); a('v_add_f32 v12, v12, v14')
    dpp_sum16(a, 12)
    a(f'v_mov_b32 v8, {f2u(1e-5)}'); a(f'v_fmac_f32 v8, {f2u(1/640)}, v12'); a('v_rsq_f32 v8, v8')
    for i in range(5):
        for j in range(8): a(f'v_mul_f32 v{80+8*i+j}, v{80+8*i+j}, v8')
        o = 20 + 4 * i
        for jj in range(4): a(f'v_cvt_pk_f16_f32 v{o+jj}, v{80+8*i+2*jj}, v{81+8*i+2*jj}')
        a(f'buffer_store_dwordx4 v[{o}:{o+3}], v10, s[8:11], s12 offen')
        if i < 4: a('s_add_u32 s12, s12, 4096')
    a('s_endpgm')
    a.label('L1_fold')
    K.srd([('ws', 4), ('wqkv', 20), ('wphi', 24)])
    a('v_lshrrev_b32 v1, 6, v0'); a('v_readfirstlane_b32 s8, v1')
    a('v_and_b32 v0, 63, v0')
    a('v_and_b32 v1, 15, v0'); a('v_lshrrev_b32 v2, 4, v0')
    a('v_lshrrev_b32 v3, 2, v1'); a('v_and_b32 v4, 3, v1')
    a('v_lshl_add_u32 v5, v3, 3, v4')
    a('v_lshlrev_b32 v10, 4, v0')
    a('s_mul_i32 s28, s2, 43'); a('s_lshr_b32 s28, s28, 8')
    a('s_mul_i32 s29, s28, 6'); a('s_sub_u32 s29, s2, s29')
    a('s_lshr_b32 s30, s29, 1'); a('s_and_b32 s29, s29, 1')
    a('s_lshl_b32 s31, s29, 4'); a('s_lshl_b32 s32, s8, 2'); a('s_add_u32 s31, s31, s32')
    a(f'v_mov_b32 v11, {OOB}')
    a('v_mul_u32_u24 v6, 3840, v5'); a('v_lshl_add_u32 v6, v2, 4, v6')
    a('v_cmp_gt_u32 vcc, 3, v2'); a('v_cndmask_b32 v6, v11, v6, vcc')
    a('s_mul_i32 s32, s28, 122880'); a('s_mul_i32 s33, s30, 1280'); a('s_add_u32 s32, s32, s33')
    a('s_mul_i32 s33, s31, 40'); a('s_add_u32 s32, s32, s33'); a('s_add_u32 s33, s32, 15360')
    a('s_mul_i32 s34, s31, 800'); a('s_lshl_b32 s35, s8, 12')
    a('s_waitcnt lgkmcnt(0)')
    a('s_mov_b32 m0, s35')
    for q in range(4): a(f'buffer_load_dwordx4 v10, s[24:27], s34 offen offset:{1024*q} lds')
    for i in range(4):
        for aa in range(2):
            r = 40 + 8 * i + 4 * aa
            a(f'buffer_load_dwordx4 v[{r}:{r+3}], v6, s[20:23], s{32+aa} offen offset:{40*i}')
    a('s_cmp_ge_u32 s28, 10'); a('s_cselect_b32 s36, 1, 0'); a('s_mul_i32 s37, s36, 10'); a('s_sub_u32 s37, s28, s37')
    a('s_lshl_b32 s37, s37, 1'); a('s_add_u32 s37, s37, s36'); a('s_lshl_b32 s37, s37, 13')
    a('s_lshr_b32 s36, s31, 1'); a('s_mul_i32 s36, s36, 163840'); a('s_add_u32 s37, s37, s36'); a(f's_add_u32 s37, s37, {WQKV}')
    a('s_add_u32 s38, s37, 163840')
    a('v_cmp_eq_u32 s[46:47], 2, v2')
    a('s_cmp_eq_u32 s30, 2'); a('s_cbranch_scc1 L1_v')
    a('s_lshl_b32 s39, s30, 6')
    a('v_lshlrev_b32 v20, 10, v3'); a('v_lshl_add_u32 v20, v2, 8, v20'); a('v_lshl_add_u32 v20, v4, 4, v20'); a('v_add_u32 v20, s39, v20')
    a('v_add_u32 v21, 4096, v20'); a('v_cmp_gt_u32 vcc, 4, v1'); a('v_cndmask_b32 v21, v11, v21, vcc')
    a('v_add_u32 v22, 128, v20'); a('v_add_u32 v23, 128, v21')
    a('v_lshl_add_u32 v7, v2, 3, v3'); a('v_mul_u32_u24 v7, 40, v7'); a('v_lshl_add_u32 v7, v4, 3, v7'); a('v_add_u32 v7, s35, v7')
    a('s_waitcnt vmcnt(8)')
    for i in range(4):
        for nt in range(2):
            for hh in range(2):
                r = 72 + 8 * i + 4 * nt + 2 * hh
                a(f'ds_read_b64_tr_b16 v[{r}:{r+1}], v7 offset:{800*i + 160*hh + 32*nt}')
    a('s_branch L1_mm')
    a.label('L1_v')
    a('v_add_u32 v7, 16, v1'); a('v_cmp_gt_u32 vcc, 4, v1'); a('v_mov_b32 v8, 100'); a('v_cndmask_b32 v7, v8, v7, vcc')
    sel_frags(a, 72, 1, 2, 24, 1, 0); sel_frags(a, 76, 7, 2, 24, 1, 0)
    for i in range(1, 4):
        for j in range(8): a(f'v_mov_b32 v{72+8*i+j}, v{72+j}')
    a('v_lshlrev_b32 v20, 8, v2'); a('v_lshl_add_u32 v20, v1, 4, v20')
    a('v_add_u32 v21, 6144, v20'); a('v_cmp_gt_u32 vcc, 8, v1'); a('v_cndmask_b32 v21, v11, v21, vcc')
    a('v_add_u32 v22, 7168, v20'); a('v_add_u32 v23, 128, v21'); a('v_add_u32 v20, 5120, v20')
    a.label('L1_mm')
    a('s_waitcnt vmcnt(0) lgkmcnt(0)')
    for i in range(4):
        for aa in range(2):
            r = 40 + 8 * i + 4 * aa
            a(f'v_cndmask_b32 v{r+2}, v{r+2}, 0, s[46:47]'); a(f'v_cndmask_b32 v{r+3}, v{r+3}, 0, s[46:47]')
    for i in range(4):
        for nt in range(2):
            for aa in range(2):
                r = 40 + 8 * i + 4 * aa; d = 104 + 8 * nt + 4 * aa; b = 72 + 8 * i + 4 * nt
                a(f'v_mfma_f32_16x16x32_bf16 v[{d}:{d+3}], v[{r}:{r+3}], v[{b}:{b+3}], 0')
        for nt in range(2):
            d = 104 + 8 * nt; o = 24 + 4 * nt + 8 * (i & 1)
            for jj in range(4): a(f'v_cvt_pk_bf16_f32 v{o+jj}, v{d+2*jj}, v{d+2*jj+1}')
            a(f'buffer_store_dwordx4 v[{o}:{o+3}], v{20 + 2*(i & 1) + nt}, s[4:7], s{37 + (i >> 1)} offen')
    a.label('L1_end')
    a('s_endpgm')
    return K

def gemm_main(a, MT, NT, KS, CK, PF, LD, ring, vA, APOOL, vB, vacc, vD, vL, sA, sB, sLw,
              NTD=None, orient=None, inject=None, PF0=None, xf=None, pre_rounds=0, asc='', PFB=None):
    W = 8; sWS = 4
    NTD = NTD or NT
    orient = orient or ['T'] * NT
    inject = inject or {}
    PF0 = PF0 or PF
    PFB = PFB or PF
    assert ring % W == 0 and (ring >= KS * NTD or ring % NTD == 0)
    nrounds = (KS * NTD + W - 1) // W
    vm = []
    st = dict(round=pre_rounds, synced=-1, consumed=-1, lds_done=0, issued=0, visible=-1)
    ldsq = []
    def areg(u, m): return vA + ((u % APOOL) * MT + m) * 4
    def breg(u, t): return vB + ((u % (LD + 1)) * NT + t) * 4
    def dma_ops(x):
        ops = []
        last_round = min(nrounds - 1, (NTD * min(x, KS - 1) + NTD - 1) // W)
        while st['round'] <= last_round:
            r = st['round']
            old = r * W + W - 1 - ring
            if old >= 0 and old // NTD > st['consumed']: break
            st['round'] += 1
            def dma(r=r):
                a(f's_add_u32 m0, s{sLw}, {((r * W) % ring) * 1024}')
                a(f'buffer_load_dwordx4 v{vD}, s[{sWS}:{sWS+3}], s{sB} offen lds')
                a(f's_add_u32 s{sB}, s{sB}, {W * 1024}')
                vm.append(('B', (r * W) // NTD, r))
            ops.append(dma)
        return ops
    def a_ops(x):
        ops = []
        for m in range(MT):
            def lda(m=m):
                r = areg(x, m)
                a(f'buffer_load_dwordx4 v[{r}:{r+3}], v{vD}, s[{sWS}:{sWS+3}], s{sA[m]} offen offset:{(x % 4) * 1024} {asc}')
                if x % 4 == 3: a(f's_add_u32 s{sA[m]}, s{sA[m]}, 4096')
                vm.append(('A', x, 0))
            ops.append(lda)
        return ops
    def sync(step, cur, first=False):
        c = step // CK
        if step >= KS or c <= st['synced']: return
        st['synced'] = c
        lim = min(KS, (c + 1) * CK)
        need_round = min(nrounds - 1, (NTD * (lim - 1) + NTD - 1) // W)
        assert st['round'] > need_round, ('B round not issued in time', step, need_round, st['round'])
        last = max(i for i, e in enumerate(vm) if e[1] < lim)
        n = len(vm) - 1 - last
        assert n <= 63
        a(f's_waitcnt vmcnt({n})' + (' lgkmcnt(0)' if first else ''))
        more_dma = st['round'] < nrounds
        if first or need_round > st['visible'] or more_dma:
            a('s_barrier'); st['consumed'] = cur - 1
            done = [e[2] for e in vm[:last + 1] if e[0] == 'B']
            st['visible'] = max([pre_rounds - 1] + done)
    def lds_read(u, t):
        off = ((u * NTD + t) % ring) * 1024
        r = breg(u, t)
        a(f'ds_read_b128 v[{r}:{r+3}], v{vL[off >> 16]} offset:{off & 0xffff}')
        ldsq.append((u, t))
    def g_read(u, q):
        r = xf['vG'] + (u % 2) * 16 + 4 * q
        a(f'ds_read_b128 v[{r}:{r+3}], v{xf["vaddr"]} offset:{xf["off"](u, q)}')
        ldsq.append(('g', u, q))
    def lds_wait(key):
        i = ldsq.index(key)
        if i < st['lds_done']: return
        n = len(ldsq) - 1 - i
        a(f's_waitcnt lgkmcnt({min(n, 15)})')
        st['lds_done'] = len(ldsq) - min(n, 15)
    def vm_extra(n=1):
        for _ in range(n): vm.append(('X', 10**9, 0))
    def xf_ops(u):
        if not xf or u >= KS: return []
        return [lambda: lds_wait(('g', u, 3))] + xf['emit'](u, [areg(u, m) for m in range(MT)], xf['vG'] + (u % 2) * 16)
    for x in range(min(PF0, KS)):
        for op in dma_ops(x) + a_ops(x): op()
    st['issued'] = min(PF0, KS)
    if 'pro' in inject: inject['pro'](vm_extra)
    for u in range(min(LD, KS)):
        sync(u, 0, first=(u == 0))
        if u == 0 and xf:
            for uu in range(2):
                for q in range(4): g_read(uu, q)
        for t in range(NT): lds_read(u, t)
    for op in xf_ops(0): op()
    for u in range(KS):
        sync(u + LD, u)
        nm = NT * MT
        pos = {i: [] for i in range(nm)}
        if u + LD < KS:
            for t in range(NT): pos[min(nm - 1, t * MT)].append(lambda t=t: lds_read(u + LD, t))
        vmo = dma_ops(u + PFB)
        cnt = 0
        while st['issued'] < min(KS, u + PF + 1) and cnt < 2:
            vmo += a_ops(st['issued']); st['issued'] += 1; cnt += 1
        if u in inject: vmo.append(lambda: inject[u](vm_extra))
        for j, f in enumerate(vmo): pos[min(nm - 1, (j * nm) // max(1, len(vmo)) + (1 if MT > 1 else 0))].append(f)
        xo = xf_ops(u + 1)
        for j, f in enumerate(xo): pos[min(nm - 1, 1 + (j * (nm - 3)) // max(1, len(xo)))].append(f)
        if xf and u + 2 < KS:
            for q in range(4): pos[nm - 4 + q].append(lambda q=q: g_read(u + 2, q))
        i = 0
        for t in range(NT):
            lds_wait((u, t))
            for m in range(MT):
                d = vacc + (m * NT + t) * 4
                A_, B_ = areg(u, m), breg(u, t)
                x0, x1 = (B_, A_) if orient[t] == 'T' else (A_, B_)
                c = f'v[{d}:{d+3}]' if u else '0'
                a(f'v_mfma_f32_16x16x32_bf16 v[{d}:{d+3}], v[{x0}:{x0+3}], v[{x1}:{x1+3}], {c}')
                for f in pos[i]: f()
                i += 1
    return vm

RING2 = 96
GS = RING2 * 1024; PKB = GS + 5120; PITCH = 176; VB_ = PKB + 128 * PITCH; PQB = VB_ + 12288
TAB = 159744
CST = TAB + 1536
KF = PKB
X3 = PKB
LDS_TOTAL = 163840
assert PQB + 8 * 2560 + 512 <= TAB and CST + 2560 <= LDS_TOTAL

_lbl = [0]
def newlbl(p):
    _lbl[0] += 1; return f'{p}_{_lbl[0]}'

def set_flags(a, offs):
    L = newlbl('Lsf')
    a('s_cmp_lg_u32 s8, 0'); a(f's_cbranch_scc1 {L}')
    a('v_mov_b32 v2, 1'); a('v_mov_b32 v3, 0'); a('s_mov_b64 exec, 1')
    for o in offs: a(f'buffer_store_dword v2, v3, s[4:7], {o} offen sc1')
    a('s_mov_b64 exec, -1')
    a.label(L)

def poll(a, groups, wave=0):
    L = newlbl('Lpw')
    a(f's_cmp_lg_u32 s8, {wave}'); a(f's_cbranch_scc1 {L}')
    a('v_lshlrev_b32 v3, 2, v0')
    for so, n in groups:
        Lp = newlbl('Lpl'); Le = newlbl('Lpe')
        a(f's_mov_b32 exec_lo, {hex((1 << n) - 1)}'); a('s_mov_b32 exec_hi, 0'); a('s_mov_b32 s58, 0')
        a.label(Lp)
        a(f'buffer_load_dword v2, v3, s[4:7], {so} offen sc1'); a('s_add_u32 s58, s58, 1')
        a('s_waitcnt vmcnt(0)'); a('v_cmp_eq_u32 vcc, 1, v2')
        a(f's_cmp_gt_u32 s58, {SPIN_MAX}'); a(f's_cbranch_scc1 {Le}')
        a('s_cmp_eq_u64 vcc, exec'); a(f's_cbranch_scc0 {Lp}')
        a.label(Le)
    a('s_mov_b64 exec, -1')
    a.label(L)
    a('s_barrier')

def dma_rounds(a, r0, r1, sB, nfrags):
    for r in range(r0, r1):
        L = None
        if (r + 1) * 8 > nfrags:
            L = newlbl('Ld'); a(f's_cmp_ge_u32 s8, {nfrags - r*8}'); a(f's_cbranch_scc1 {L}')
        a(f's_add_u32 m0, s9, {r * 8192}')
        a(f'buffer_load_dwordx4 v1, s[4:7], s{sB} offen lds')
        if L: a.label(L)
        a(f's_add_u32 s{sB}, s{sB}, 8192')

def mega(p2=(4, 3, 1, 1), p4=(6, 4, 2, 1), p5=(8, 6, 1, 2)):
    K = MKernel('mega_kernel', 256, 512, LDS_TOTAL); a = K.a
    a('s_cmp_ge_u32 s2, 256'); a('s_cbranch_scc1 LM_end')
    K.srd([('ws', 4), ('x', 32), ('out', 36), ('wg', 40), ('wu', 44), ('wd', 48), ('wo', 52)])
    a('v_lshlrev_b32 v8, 4, v0')
    a('v_mov_b32 v9, 1.0'); a('v_cmp_lt_u32 vcc, 159, v0'); a('v_cndmask_b32 v9, 0, v9, vcc')
    a('v_mov_b32 v250, v0')
    a('v_lshrrev_b32 v1, 6, v0'); a('v_readfirstlane_b32 s8, v1')
    a('v_and_b32 v0, 63, v0'); a('v_lshlrev_b32 v1, 4, v0'); a('s_lshl_b32 s9, s8, 10')
    a('s_bfe_u32 s10, s2, 0x20001'); a('s_lshl_b32 s10, s10, 2'); a('s_bfe_u32 s11, s2, 0x20003'); a('s_add_u32 s10, s10, s11')
    a('s_and_b32 s11, s2, 1'); a('s_lshl_b32 s11, s11, 3'); a('s_lshr_b32 s12, s2, 5'); a('s_add_u32 s11, s11, s12')
    a('s_and_b32 s24, s2, 7'); a('s_lshl_b32 s24, s24, 2'); a('s_lshr_b32 s12, s2, 6'); a('s_add_u32 s24, s24, s12')
    a('s_bfe_u32 s25, s2, 0x30003')
    a('s_and_b32 s26, s2, 1'); a('s_lshl_b32 s26, s26, 2'); a('s_bfe_u32 s12, s2, 0x20003'); a('s_add_u32 s26, s26, s12')
    a('s_bfe_u32 s27, s2, 0x20001'); a('s_lshl_b32 s27, s27, 3'); a('s_lshr_b32 s12, s2, 5'); a('s_add_u32 s27, s27, s12')
    a('s_and_b32 s28, s8, 1'); a('s_lshr_b32 s29, s8, 1')
    PF, PF0, CK, LD = p2
    a('s_lshl_b32 s17, s28, 13'); a('v_add_u32 v2, s17, v1'); a('v_add_u32 v3, 0x10000, v2')
    a('s_lshl_b32 s12, s11, 3'); a('s_add_u32 s13, s12, s8'); a('s_xor_b32 s17, s8, 1'); a('s_add_u32 s17, s12, s17')
    a('s_mul_i32 s18, s28, 10240'); a(f's_add_u32 s18, s18, {H1}')
    a('s_mul_i32 s12, s13, 20480'); a('s_add_u32 s12, s12, s18'); a('s_mul_i32 s13, s17, 20480'); a('s_add_u32 s13, s13, s18')
    a('s_mul_i32 s15, s10, 163840'); a('s_add_u32 s15, s15, s9'); a(f's_add_u32 s15, s15, {WQKV}')
    a(f's_mov_b32 s14, {f2u(LOG2E)}')
    a('v_lshrrev_b32 v4, 4, v0'); a('v_lshlrev_b32 v4, 5, v4'); a('s_mul_i32 s17, s28, 1280'); a('v_add_u32 v4, s17, v4'); a(f'v_add_u32 v4, {GS}, v4')
    a('s_waitcnt lgkmcnt(0)')
    APOOL = PF + 2
    vG = 12; vT = 44; vA = 60; vB = vA + APOOL * 8; vacc = vB + 64
    assert vacc + 64 <= 250 and vB == 108
    a('s_cmp_ge_u32 s8, 5'); a('s_cbranch_scc1 L2_nomod')
    for p in range(4):
        a(f's_mov_b32 s17, {MODP + 15360*p}')
        a(f'buffer_load_dwordx4 v[{vG+4*p}:{vG+4*p+3}], v8, s[4:7], s17 offen')
    a.label('L2_nomod')
    def pro(extra):
        a('s_cmp_ge_u32 s8, 5'); a('s_cbranch_scc1 L2_nomod2')
        a(f's_waitcnt vmcnt({4 * PF0})')
        sum4_round(a, vG, add='v9')
        a(f'v_add_u32 v8, {GS}, v8'); a(f'ds_write_b128 v8, v[{vG}:{vG+3}]')
        a.label('L2_nomod2')
    def emit(u, ar, g):
        ops = []
        for m, r in enumerate(ar):
            for h in range(2):
                def f(r=r, h=h, m=m):
                    t = vT + 8 * ((2 * m + h) & 1)
                    for j in range(4):
                        sel = ' op_sel:[1,0,0]' if j & 1 else ''
                        a(f'v_fma_mix_f32 v{t+j}, v{r+2*h+(j>>1)}, v{g+8+4*h+j}, v{g+4*h+j}{sel} op_sel_hi:[1,0,0]')
                    for j in range(2): a(f'v_cvt_pk_bf16_f32 v{r+2*h+j}, v{t+2*j}, v{t+2*j+1}')
                ops.append(f)
        return ops
    xf = dict(vG=vG, vaddr=4, off=lambda u, q: (q >> 1) * 2560 + u * 128 + (q & 1) * 16, emit=emit)
    gemm_main(a, 2, 8, 10, CK, PF, LD, RING2, vA, APOOL, vB, vacc, 1, [2, 3], [12, 13], 15, 9,
              NTD=16, orient=['T'] * 5 + ['N'] * 3, inject={'pro': pro}, PF0=PF0, xf=xf)
    a.stamp(1)
    a('s_lshl_b32 s17, s8, 13'); a('v_add_u32 v5, s17, v1'); a('s_xor_b32 s17, s17, 0x2000'); a('v_add_u32 v6, s17, v1')
    a('s_barrier')
    for t in range(8): a(f'ds_write_b128 v5, v[{vacc+32+4*t}:{vacc+35+4*t}] offset:{1024*t}')
    a('v_and_b32 v240, 15, v0'); a('v_lshrrev_b32 v241, 4, v0')
    a('v_lshrrev_b32 v242, 2, v240'); a('v_and_b32 v243, 3, v240'); a('v_lshl_add_u32 v244, v242, 3, v243')
    SL = 108
    a('s_cmp_ge_u32 s8, 6'); a('s_cbranch_scc1 LS_ld5')
    a('s_cmp_ge_u32 s8, 3'); a('s_cselect_b32 s60, 1, 0'); a('s_mul_i32 s61, s60, 3'); a('s_sub_u32 s61, s8, s61')
    a('s_lshl_b32 s62, s61, 3'); a('s_add_u32 s62, s62, s26')
    a('s_mul_i32 s63, s62, 110592'); a('s_mul_i32 s64, s27, 112'); a('s_add_u32 s63, s63, s64'); a('s_lshl_b32 s64, s60, 6'); a('s_add_u32 s63, s63, s64')
    a('s_add_u32 s64, s63, 13824')
    a('v_mul_u32_u24 v245, 3456, v244'); a('v_lshl_add_u32 v245, v241, 4, v245')
    for aa in range(2):
        for mtx in range(2):
            r = SL + 8 * mtx + 4 * aa
            a(f'buffer_load_dwordx4 v[{r}:{r+3}], v245, s[{40+4*mtx}:{43+4*mtx}], s{63+aa} offen')
    a('s_branch LS_ldd')
    a.label('LS_ld5')
    a('v_mul_u32_u24 v245, 1280, v244'); a('v_lshl_add_u32 v245, v241, 4, v245')
    a('s_mul_i32 s63, s24, 40960'); a('s_mul_i32 s64, s25, 160'); a('s_add_u32 s63, s63, s64'); a('s_add_u32 s64, s63, 5120')
    a('s_cmp_eq_u32 s8, 7'); a('s_cbranch_scc1 LS_ldo')
    for un in range(2):
        for aa in range(2):
            for cb in range(3):
                r = SL + 24 * un + 12 * aa + 4 * cb
                a(f'buffer_load_dwordx4 v[{r}:{r+3}], v245, s[48:51], s{63+aa} offen offset:{64*cb}')
        if un == 0: a(f's_add_u32 s63, s63, {32*40960}'); a(f's_add_u32 s64, s64, {32*40960}')
    a('s_branch LS_ldd')
    a.label('LS_ldo')
    for aa in range(2):
        for cb in range(3):
            r = SL + 12 * aa + 4 * cb
            a(f'buffer_load_dwordx4 v[{r}:{r+3}], v245, s[52:55], s{63+aa} offen offset:{64*cb}')
    a.label('LS_ldd')
    a('s_cmp_ge_u32 s8, 2'); a('s_cbranch_scc1 LS_notab')
    a('s_mul_i32 s65, s25, 20'); a('s_lshl_b32 s66, s26, 3')
    a('v_add_u32 v246, s65, v250'); a('v_add_u32 v246, 320, v246')
    a('v_add_u32 v247, 460, v246'); a('v_cmp_lt_u32 vcc, 19, v250'); a('v_cndmask_b32 v246, v246, v247, vcc')
    a('v_subrev_u32 v247, 40, v250'); a('v_subrev_u32 v249, 64, v250'); a('v_cmp_lt_u32 s[56:57], 63, v250'); a('v_cndmask_b32 v247, v247, v249, s[56:57]')
    a('v_lshrrev_b32 v248, 3, v247'); a('v_and_b32 v247, 7, v247'); a('v_lshl_add_u32 v247, v248, 6, v247'); a('v_add_u32 v247, s66, v247')
    a('v_add_u32 v247, 480, v247'); a('v_add_u32 v248, 160, v247'); a('v_cndmask_b32 v247, v247, v248, s[56:57]')
    a('v_cmp_lt_u32 vcc, 39, v250'); a('v_cndmask_b32 v246, v246, v247, vcc')
    a('v_lshlrev_b32 v246, 4, v246')
    a('v_mov_b32 v248, 1.0'); a('v_cndmask_b32 v249, 0, v248, s[56:57]')
    for p in range(4):
        a(f's_mov_b32 s17, {MODP + 15360*p}')
        a(f'buffer_load_dwordx4 v[{156+4*p}:{159+4*p}], v246, s[4:7], s17 offen')
    a.label('LS_notab')
    a('v_lshrrev_b32 v8, 5, v0')
    a('s_lshl_b32 s17, s8, 4'); a('v_add_u32 v10, s17, v240'); a(f'v_mul_u32_u24 v10, {PITCH}, v10')
    a('v_mul_u32_u24 v11, 80, v8'); a('v_add_u32 v10, v10, v11'); a(f'v_add_u32 v10, {PKB}, v10')
    a('v_mul_u32_u24 v9, 1280, v8'); a('v_lshl_add_u32 v9, v240, 4, v9'); a('s_mul_i32 s17, s8, 2560'); a(f's_add_u32 s17, s17, {PQB}'); a('v_add_u32 v9, s17, v9')
    a('s_mul_i32 s17, s29, 3072'); a('s_lshl_b32 s18, s28, 3')
    a('s_add_u32 s17, s17, s18'); a(f's_add_u32 s17, s17, {VB_}'); a('v_add_u32 v11, s17, v1')
    a('v_and_b32 v12, 7, v0'); a('v_cmp_eq_u32 s[20:21], 4, v12'); a('v_mov_b32 v13, 0x3f803f80')
    a('s_waitcnt lgkmcnt(0)'); a('s_barrier')
    X = 16
    for t in range(8): a(f'ds_read_b128 v[{X+4*t}:{X+4*t+3}], v6 offset:{1024*t}')
    P = vacc
    for t in range(8):
        a(f's_waitcnt lgkmcnt({7-t})')
        for h in range(2): a(f'v_pk_add_f32 v[{P+4*t+2*h}:{P+4*t+2*h+1}], v[{P+4*t+2*h}:{P+4*t+2*h+1}], v[{X+4*t+2*h}:{X+4*t+2*h+1}]')
    a(f'v_max3_f32 v14, v{P}, v{P+1}, v{P+2}'); a(f'v_min3_f32 v15, v{P}, v{P+1}, v{P+2}')
    a(f'v_max3_f32 v16, v{P+3}, v{P+4}, v{P+5}'); a(f'v_min3_f32 v17, v{P+3}, v{P+4}, v{P+5}')
    for f in range(6, 18, 4):
        a(f'v_max3_f32 v14, v14, v{P+f}, v{P+f+1}'); a(f'v_min3_f32 v15, v15, v{P+f}, v{P+f+1}')
        a(f'v_max3_f32 v16, v16, v{P+f+2}, v{P+f+3}'); a(f'v_min3_f32 v17, v17, v{P+f+2}, v{P+f+3}')
    a(f'v_max3_f32 v14, v14, v{P+18}, v{P+19}'); a(f'v_min3_f32 v15, v15, v{P+18}, v{P+19}')
    for t in range(3):
        for jj in range(2): a(f'v_cvt_pk_bf16_f32 v{100+2*t+jj}, v{P+20+4*t+2*jj}, v{P+21+4*t+2*jj}')
    a('v_max_f32 v14, v14, v16'); a('v_min_f32 v15, v15, v17')
    a('v_cndmask_b32 v102, v102, v13, s[20:21]'); a('v_cndmask_b32 v103, v103, v13, s[20:21]')
    a('v_mul_f32 v14, s14, v14'); a('v_mul_f32 v15, s14, v15')
    for t in range(3): a(f'ds_write_b64 v11, v[{100+2*t}:{101+2*t}] offset:{1024*t}')
    E = 18
    a('s_mov_b32 s22, s14'); a('s_mov_b32 s23, s14')
    for f in range(0, 20, 2):
        a(f'v_pk_fma_f32 v[{E+f}:{E+f+1}], v[{P+f}:{P+f+1}], s[22:23], v[14:15] op_sel_hi:[1,1,0] neg_lo:[0,0,1] neg_hi:[0,0,1]')
        a(f'v_pk_fma_f32 v[{E+20+f}:{E+21+f}], v[{P+f}:{P+f+1}], s[22:23], v[14:15] op_sel:[0,0,1] op_sel_hi:[1,1,1] neg_lo:[1,0,0] neg_hi:[1,0,0]')
    for f in range(40): a(f'v_exp_f32 v{E+f}, v{E+f}')
    a(f'v_pk_add_f32 v[58:59], v[{E}:{E+1}], v[{E+2}:{E+3}]'); a(f'v_pk_add_f32 v[60:61], v[{E+20}:{E+21}], v[{E+22}:{E+23}]')
    a(f'v_pk_add_f32 v[62:63], v[{E+4}:{E+5}], v[{E+6}:{E+7}]'); a(f'v_pk_add_f32 v[64:65], v[{E+24}:{E+25}], v[{E+26}:{E+27}]')
    for f in range(8, 20, 4):
        a(f'v_pk_add_f32 v[58:59], v[58:59], v[{E+f}:{E+f+1}]'); a(f'v_pk_add_f32 v[60:61], v[60:61], v[{E+20+f}:{E+21+f}]')
        a(f'v_pk_add_f32 v[62:63], v[62:63], v[{E+f+2}:{E+f+3}]'); a(f'v_pk_add_f32 v[64:65], v[64:65], v[{E+22+f}:{E+23+f}]')
    a('v_pk_add_f32 v[58:59], v[58:59], v[62:63]'); a('v_pk_add_f32 v[60:61], v[60:61], v[64:65]')
    a('v_add_f32 v58, v58, v59'); a('v_add_f32 v60, v60, v61')
    a('v_rcp_f32 v58, v58'); a('v_rcp_f32 v60, v60')
    O = 68
    for f in range(0, 40, 2):
        rr = 58 if f < 20 else 60
        a(f'v_pk_mul_f32 v[{E+f}:{E+f+1}], v[{E+f}:{E+f+1}], v[{rr}:{rr+1}] op_sel_hi:[1,0]')
    for jj in range(20): a(f'v_cvt_pk_bf16_f32 v{O+jj}, v{E+2*jj}, v{E+2*jj+1}')
    a('s_mov_b32 exec_lo, 0xffff0000'); a('s_mov_b32 exec_hi, 0xffff0000')
    for o in range(5): a(f'ds_write_b128 v10, v[{O+4*o}:{O+4*o+3}] offset:{16*o}')
    a('s_mov_b32 exec_lo, 0xffff'); a('s_mov_b32 exec_hi, 0xffff')
    for o in range(5): a(f'ds_write_b128 v9, v[{O+4*o}:{O+4*o+3}] offset:{256*o}')
    a('s_mov_b64 exec, -1')
    a('s_cmp_ge_u32 s8, 2'); a('s_cbranch_scc1 LS_notab2')
    a('s_waitcnt vmcnt(0)')
    sum4_round(a, 156, add='v249')
    a('v_lshlrev_b32 v246, 4, v250'); a(f'v_add_u32 v246, {TAB}, v246')
    a('v_cmp_gt_u32 vcc, 88, v250'); a('s_and_b64 exec, vcc, exec') ; a('ds_write_b128 v246, v[156:159]'); a('s_mov_b64 exec, -1')
    a.label('LS_notab2')
    a('s_cmp_ge_u32 s8, 3'); a('s_cselect_b32 s16, 1, 0'); a('s_mul_i32 s17, s16, 3'); a('s_sub_u32 s17, s8, s17')
    a('v_lshrrev_b32 v8, 2, v0'); a(f'v_mul_u32_u24 v8, {PITCH}, v8'); a('v_and_b32 v9, 3, v0'); a('v_lshl_add_u32 v8, v9, 3, v8')
    a('s_mul_i32 s18, s16, 80'); a('s_lshl_b32 s19, s17, 5'); a('s_add_u32 s18, s18, s19'); a(f's_add_u32 s18, s18, {PKB}')
    a('v_add_u32 v8, s18, v8')
    a('s_lshl_b32 s18, s16, 11'); a(f's_add_u32 s18, s18, {VB_}'); a('v_add_u32 v9, s18, v1')
    a(f'v_add_u32 v10, {VB_ + 1024}, v1')
    a('s_lshl_b32 s18, s11, 5'); a('s_lshl_b32 s19, s10, 1'); a('s_add_u32 s18, s18, s19'); a('s_add_u32 s18, s18, s16')
    a('s_mul_i32 s18, s18, 3360'); a('s_lshl_b32 s19, s17, 6'); a('s_add_u32 s18, s18, s19'); a(f's_add_u32 s18, s18, {KVP}')
    a('v_mul_u32_u24 v12, 160, v240'); a('v_lshl_add_u32 v12, v241, 4, v12')
    a(f'v_mov_b32 v14, {OOB}')
    a('s_lshl_b32 s19, s17, 2'); a('v_add_u32 v11, s19, v241'); a('v_cmp_gt_u32 vcc, 10, v11'); a('v_cndmask_b32 v12, v14, v12, vcc')
    a('s_lshl_b32 s19, s16, 3'); a('v_subrev_u32 v11, s19, v240')
    a('s_mul_i32 s19, s16, 1280'); a('s_sub_u32 s19, 2560, s19'); a('v_add_u32 v13, s19, v12')
    a('v_cmp_gt_u32 vcc, 5, v11'); a('v_cndmask_b32 v13, v14, v13, vcc')
    a('s_waitcnt lgkmcnt(0)'); a('s_barrier')
    a.stamp(2)
    a('s_cmp_ge_u32 s8, 6'); a('s_cbranch_scc1 L2_nokv')
    for ks in range(4):
        r = 16 + 12 * ks
        a(f'ds_read_b64_tr_b16 v[{r}:{r+1}], v8 offset:{ks*32*PITCH}')
        a(f'ds_read_b64_tr_b16 v[{r+2}:{r+3}], v8 offset:{(ks*32+16)*PITCH}')
        a(f'ds_read_b128 v[{r+4}:{r+7}], v9 offset:{ks*3072}')
        a(f'ds_read_b128 v[{r+8}:{r+11}], v10 offset:{ks*3072}')
    for ks in range(4):
        r = 16 + 12 * ks
        a(f's_waitcnt lgkmcnt({4*(3-ks)})')
        c0 = 'v[92:95]' if ks else '0'; c1 = 'v[96:99]' if ks else '0'
        a(f'v_mfma_f32_16x16x32_bf16 v[92:95], v[{r}:{r+3}], v[{r+4}:{r+7}], {c0}')
        a(f'v_mfma_f32_16x16x32_bf16 v[96:99], v[{r}:{r+3}], v[{r+8}:{r+11}], {c1}')
    a('buffer_store_dwordx4 v[92:95], v12, s[4:7], s18 offen sc1')
    a('buffer_store_dwordx4 v[96:99], v13, s[4:7], s18 offen sc1')
    a.label('L2_nokv')
    a('s_cmp_ge_u32 s8, 6'); a('s_cbranch_scc1 LS_sel5')
    a('v_and_b32 v8, 1, v240'); a('v_lshl_add_u32 v9, v242, 3, v8'); a('v_lshl_add_u32 v8, v242, 1, v8')
    a('s_cmp_eq_u32 s60, 0'); a('s_cselect_b64 vcc, -1, 0'); a('v_cndmask_b32 v8, v8, v9, vcc')
    a('v_mov_b32 v9, 100'); a('v_and_b32 v11, 2, v240'); a('v_cmp_eq_u32 vcc, 0, v11'); a('v_cndmask_b32 v11, v9, v8, vcc'); a('v_cndmask_b32 v8, v8, v9, vcc')
    a('s_cmp_eq_u32 s60, 0'); a('s_cbranch_scc0 LS_selB')
    sel_frags(a, 16, 11, 241, 12, 4, 2); sel_frags(a, 32, 8, 241, 12, 4, 2)
    a('s_branch LS_seld')
    a.label('LS_selB')
    sel_frags(a, 16, 11, 241, 12, 3, 8); sel_frags(a, 32, 8, 241, 12, 3, 8)
    a('s_branch LS_seld')
    a.label('LS_sel5')
    sel_frags(a, 16, 244, 241, 12, 2, 4); sel_frags(a, 24, 240, 241, 12, 1, 0)
    a.label('LS_seld')
    a('s_lshl_b32 s17, s10, 7'); a('s_lshl_b32 s18, s11, 2'); a('s_add_u32 s18, s18, s17'); a(f's_add_u32 s18, s18, {F2}')
    a('s_waitcnt vmcnt(0)'); a('s_barrier')
    set_flags(a, ['s18'])
    a.stamp(3)
    for j in range(4): a(f'v_mov_b32 v{4+j}, 0')
    a('v_lshlrev_b32 v8, 4, v250'); a(f'v_add_u32 v8, {KF}, v8'); a('ds_write_b128 v8, v[4:7]')
    a(f'v_add_u32 v8, {KF + 8192}, v1'); a('ds_write_b128 v8, v[4:7]')
    a('s_cmp_ge_u32 s8, 6'); a('s_cbranch_scc1 LS_do5')
    for j in range(32): a(f'v_mov_b32 v{72+j}, 0')
    a('s_cmp_ge_u32 s62, 20'); a('s_cbranch_scc1 LS_wgu_skip')
    a('s_cmp_ge_u32 s27, 31'); a('s_cbranch_scc1 LS_wgu_skip')
    a('s_lshl_b32 s17, s61, 7'); a(f's_add_u32 s17, s17, {TAB + 640}'); a('v_lshlrev_b32 v8, 5, v241'); a('v_add_u32 v8, s17, v8')
    a('ds_read_b128 v[172:175], v8'); a('ds_read_b128 v[176:179], v8 offset:16'); a('ds_read_b128 v[180:183], v8 offset:384'); a('ds_read_b128 v[184:187], v8 offset:400')
    for j in range(4): a(f'v_mov_b32 v{48+j}, 0x3f803f80')
    a('s_mul_i32 s17, s27, 143360'); a('s_mul_i32 s18, s62, 7168'); a('s_add_u32 s17, s17, s18'); a('s_lshl_b32 s18, s60, 12'); a('s_add_u32 s17, s17, s18'); a(f's_add_u32 s17, s17, {WGU}')
    a('s_waitcnt lgkmcnt(0)')
    for jj in range(4): a(f'v_cvt_pk_bf16_f32 v{52+jj}, v{172+2*jj}, v{173+2*jj}')
    for tq in range(4):
        if tq == 3: a('s_cmp_eq_u32 s60, 1'); a('s_cbranch_scc1 LS_wgu_skip')
        d = 188 + 8 * (tq & 1)
        for aa in range(2):
            rg = SL + 4 * aa; ru = rg + 8
            a(f'v_mfma_f32_16x16x32_bf16 v[{d+4*aa}:{d+4*aa+3}], v[{rg}:{rg+3}], v[{16+4*tq}:{19+4*tq}], 0')
            a(f'v_mfma_f32_16x16x32_bf16 v[{d+4*aa}:{d+4*aa+3}], v[{ru}:{ru+3}], v[{32+4*tq}:{35+4*tq}], v[{d+4*aa}:{d+4*aa+3}]')
        un = 56 + 4 * (tq & 1); o = 64 + 4 * (tq & 1)
        for jj in range(4): a(f'v_cvt_pk_bf16_f32 v{un+jj}, v{d+2*jj}, v{d+2*jj+1}')
        for j in range(8): a(f'v_mul_f32 v{d+j}, v{d+j}, v{180+j}')
        for jj in range(4): a(f'v_cvt_pk_bf16_f32 v{o+jj}, v{d+2*jj}, v{d+2*jj+1}')
        a(f'buffer_store_dwordx4 v[{o}:{o+3}], v1, s[4:7], s17 offen offset:{1024*tq} sc1')
        cs = 72 + 8 * tq; bs = cs + 4
        a(f'v_mfma_f32_16x16x32_bf16 v[{cs}:{cs+3}], v[48:51], v[{o}:{o+3}], 0')
        a(f'v_mfma_f32_16x16x32_bf16 v[{bs}:{bs+3}], v[52:55], v[{un}:{un+3}], 0')
    a.label('LS_wgu_skip')
    for r0, dst in ((72, 20), (76, 21)):
        a(f'v_mov_b32 v{dst}, v{r0}')
        for g in range(1, 4):
            a(f'v_cmp_eq_u32 vcc, {g}, v241'); a(f'v_cndmask_b32 v{dst}, v{dst}, v{r0+8*g}, vcc')
    a('s_lshl_b32 s17, s8, 9'); a('v_lshlrev_b32 v22, 3, v0'); a('v_add_u32 v23, s17, v22'); a('ds_write_b64 v23, v[20:21]')
    a('s_branch LS_done')
    a.label('LS_do5')
    def w5_unit(base_reg, sdst):
        for t in range(5):
            d = 188 + 8 * (t & 1); cb = t >> 1; sel = 16 + 4 * (t & 1) if t < 4 else 24
            for aa in range(2):
                r = base_reg + 12 * aa + 4 * cb
                a(f'v_mfma_f32_16x16x32_bf16 v[{d+4*aa}:{d+4*aa+3}], v[{r}:{r+3}], v[{sel}:{sel+3}], 0')
            o = 64 + 4 * (t & 1)
            for jj in range(4): a(f'v_cvt_pk_bf16_f32 v{o+jj}, v{d+2*jj}, v{d+2*jj+1}')
            if t == 4: a(f's_add_u32 {sdst}, {sdst}, 4096')
            a(f'buffer_store_dwordx4 v[{o}:{o+3}], v1, s[4:7], {sdst} offen offset:{1024*(t & 3)} sc1')
    a('s_cmp_eq_u32 s8, 7'); a('s_cbranch_scc1 LS_doo')
    for un in range(2):
        a(f's_add_u32 s17, s24, {32*un}')
        if un: a('s_cmp_ge_u32 s17, 54'); a('s_cbranch_scc1 LS_done')
        a('s_cmp_ge_u32 s17, 27'); a('s_cselect_b32 s18, 1, 0'); a('s_mul_i32 s19, s18, 27'); a('s_sub_u32 s17, s17, s19')
        a('s_lshl_b32 s17, s17, 1'); a('s_add_u32 s17, s17, s18'); a('s_mul_i32 s17, s17, 5120')
        a('s_mul_i32 s18, s25, 276480'); a('s_add_u32 s17, s17, s18'); a(f's_add_u32 s17, s17, {WD}')
        w5_unit(SL + 24 * un, 's17')
    a('s_branch LS_done')
    a.label('LS_doo')
    a('s_cmp_ge_u32 s24, 20'); a('s_cbranch_scc1 LS_done')
    a('s_cmp_ge_u32 s24, 10'); a('s_cselect_b32 s18, 1, 0'); a('s_mul_i32 s19, s18, 10'); a('s_sub_u32 s17, s24, s19')
    a('s_lshl_b32 s17, s17, 1'); a('s_add_u32 s17, s17, s18'); a('s_mul_i32 s17, s17, 5120')
    a('s_mul_i32 s18, s25, 102400'); a('s_add_u32 s17, s17, s18'); a(f's_add_u32 s17, s17, {WO}')
    w5_unit(SL, 's17')
    a.label('LS_done')
    a('s_waitcnt lgkmcnt(0)'); a('s_barrier')
    a('s_cmp_ge_u32 s8, 6'); a('s_cbranch_scc1 LS_nored'); a('s_cmp_lg_u32 s61, 0'); a('s_cbranch_scc1 LS_nored'); a('s_cmp_ge_u32 s27, 31'); a('s_cbranch_scc1 LS_nored')
    a('ds_read_b64 v[24:25], v23 offset:512'); a('ds_read_b64 v[26:27], v23 offset:1024')
    a('s_lshl_b32 s17, s27, 3'); a('s_add_u32 s17, s17, s26'); a('s_lshl_b32 s17, s17, 10'); a('s_lshl_b32 s18, s60, 8'); a('s_add_u32 s17, s17, s18'); a(f's_add_u32 s17, s17, {CSP}')
    a('v_lshlrev_b32 v22, 2, v0')
    a('s_waitcnt lgkmcnt(0)')
    a('v_pk_add_f32 v[20:21], v[20:21], v[24:25]'); a('v_pk_add_f32 v[20:21], v[20:21], v[26:27]')
    a('buffer_store_dword v20, v22, s[4:7], s17 offen sc1'); a('buffer_store_dword v21, v22, s[4:7], s17 offen offset:512 sc1')
    a.label('LS_nored')
    a('v_lshrrev_b32 v5, 1, v250')
    a('v_mul_u32_u24 v6, 1249, v5'); a('v_lshrrev_b32 v6, 17, v6')
    a('v_mul_u32_u24 v7, 105, v6'); a('v_sub_u32 v7, v5, v7')
    a('v_mul_u32_u24 v12, 205, v7'); a('v_lshrrev_b32 v12, 10, v12')
    a('v_mul_u32_u24 v13, 5, v12'); a('v_sub_u32 v13, v7, v13')
    a('v_mul_u32_u24 v16, 5, v6'); a('v_add_u32 v16, v16, v13')
    a('v_lshlrev_b32 v18, 8, v16')
    a('v_and_b32 v17, 1, v250'); a('v_lshl_add_u32 v18, v17, 3, v18'); a(f'v_add_u32 v18, {KF}, v18')
    a('v_mul_u32_u24 v14, 20, v6'); a('v_add_u32 v14, v14, v12')
    a('v_bfe_u32 v15, v14, 2, 1'); a('v_mul_u32_u24 v15, 3072, v15')
    a('v_lshrrev_b32 v17, 3, v14'); a('v_lshl_add_u32 v15, v17, 6, v15'); a('v_and_b32 v17, 3, v14'); a('v_lshl_add_u32 v15, v17, 4, v15')
    a('v_subrev_u32 v17, 32, v14'); a('v_lshrrev_b32 v19, 1, v17'); a('v_lshlrev_b32 v19, 6, v19'); a('v_and_b32 v17, 1, v17'); a('v_lshl_add_u32 v19, v17, 4, v19')
    a('v_add_u32 v19, 6176, v19')
    a('v_cmp_lt_u32 vcc, 31, v14'); a('v_cndmask_b32 v15, v15, v19, vcc')
    a('v_lshlrev_b32 v19, 4, v6'); a('v_add_u32 v19, 6144, v19'); a('v_cmp_eq_u32 s[20:21], 20, v12'); a('v_cndmask_b32 v15, v15, v19, s[20:21]')
    a('v_add_u32 v18, v18, v15')
    a('v_lshlrev_b32 v5, 4, v250'); a(f'v_mov_b32 v6, {OOB}'); a('v_mov_b32 v7, 420'); a('v_cmp_lt_u32 s[22:23], v250, v7'); a('v_cndmask_b32 v5, v6, v5, s[22:23]')
    a('s_lshl_b32 s17, s27, 7'); a('s_lshl_b32 s18, s26, 2'); a('s_add_u32 s17, s17, s18'); a(f's_add_u32 s17, s17, {FG}')
    a('s_lshl_b32 s18, s25, 7'); a('s_lshl_b32 s19, s24, 2'); a('s_add_u32 s18, s18, s19'); a(f's_add_u32 s18, s18, {FD}')
    a('s_lshl_b32 s19, s10, 7'); a(f's_add_u32 s19, s19, {F2}')
    a('s_mul_i32 s16, s10, 6720'); a(f's_add_u32 s16, s16, {KVP}')
    a('s_waitcnt vmcnt(0)'); a('s_barrier')
    set_flags(a, ['s17', 's18'])
    a.stamp(4)
    poll(a, [('s19', 16)], wave=7)
    a.stamp(5)
    for p in range(16):
        a(f'buffer_load_dwordx4 v[{64+4*p}:{67+4*p}], v5, s[4:7], s16 offen sc1')
        if p < 15: a(f's_add_u32 s16, s16, {32*3360}')
    a('s_mul_i32 s17, s8, 2560'); a(f's_add_u32 s17, s17, {PQB}'); a('v_add_u32 v8, s17, v1')
    for j in range(4): a(f'v_mov_b32 v{40+j}, 0')
    a('ds_read_b128 v[32:35], v8'); a('ds_read_b128 v[36:39], v8 offset:1024')
    a('s_mov_b32 exec_hi, 0'); a('ds_read_b128 v[40:43], v8 offset:2048'); a('s_mov_b32 exec_hi, -1')
    a('s_lshl_b32 s17, s11, 3'); a('s_add_u32 s17, s17, s8'); a('s_mul_i32 s17, s17, 20480'); a('s_mul_i32 s18, s10, 1280'); a('s_add_u32 s17, s17, s18'); a(f's_add_u32 s17, s17, {O_}')
    a('v_lshlrev_b32 v9, 4, v240'); a('v_lshl_add_u32 v9, v241, 2, v9')
    a('v_cmp_gt_u32 s[60:61], 3, v241'); a('v_cmp_gt_u32 s[62:63], 2, v241')
    a(f's_mov_b32 s64, {f2u(1e-6)}')
    a(f'v_add_u32 v10, {KF}, v1')
    for p in range(2, 16):
        a(f's_waitcnt vmcnt({15-p})')
        d = 64 + 4 * (p & 1)
        for j in range(0, 4, 2): a(f'v_pk_add_f32 v[{d+j}:{d+j+1}], v[{d+j}:{d+j+1}], v[{64+4*p+j}:{64+4*p+j+1}]')
    for j in range(0, 4, 2): a(f'v_pk_add_f32 v[{64+j}:{65+j}], v[{64+j}:{65+j}], v[{68+j}:{69+j}]')
    for jj in range(2): a(f'v_cvt_pk_bf16_f32 v{12+jj}, v{64+2*jj}, v{65+2*jj}')
    a('s_mov_b64 exec, s[22:23]'); a('ds_write_b64 v18, v[12:13]')
    a('s_and_b64 exec, exec, s[20:21]')
    for k in range(1, 4): a(f'ds_write_b64 v18, v[12:13] offset:{64*k}')
    a('s_mov_b64 exec, -1')
    a('s_waitcnt lgkmcnt(0)'); a('s_barrier')
    for f in range(9): a(f'ds_read_b128 v[{64+4*f}:{67+4*f}], v10 offset:{1024*f}')
    for ks in range(3):
        for tl in (2, 0, 1):
            f = tl * 3 + ks
            if ks == 0 and tl == 2: a('s_waitcnt lgkmcnt(0)')
            d = 100 + 4 * tl
            a(f'v_mfma_f32_16x16x32_bf16 v[{d}:{d+3}], v[{64+4*f}:{67+4*f}], v[{32+4*ks}:{35+4*ks}], {"0" if ks == 0 else f"v[{d}:{d+3}]"}')
    a('v_add_f32 v108, s64, v108'); a('v_add_f32 v109, s64, v109'); a('v_rcp_f32 v108, v108'); a('v_rcp_f32 v109, v109')
    a('v_cndmask_b32 v12, v109, v108, s[60:61]'); a('v_cndmask_b32 v13, v109, v108, s[62:63]')
    for j in range(4): a(f'v_mul_f32 v{100+j}, v{100+j}, v12')
    for j in range(4): a(f'v_mul_f32 v{104+j}, v{104+j}, v13')
    a('v_mul_f32 v110, v110, v109'); a('v_mul_f32 v111, v111, v109')
    for jj in range(4): a(f'v_cvt_pk_bf16_f32 v{16+jj}, v{100+2*jj}, v{101+2*jj}')
    a('v_cvt_pk_bf16_f32 v20, v110, v111')
    a('buffer_store_dwordx4 v[16:19], v1, s[4:7], s17 offen sc1'); a('buffer_store_dword v20, v9, s[4:7], s17 offen offset:1024 sc1')
    a('s_lshl_b32 s17, s11, 7'); a('s_lshl_b32 s18, s10, 2'); a('s_add_u32 s17, s17, s18'); a(f's_add_u32 s17, s17, {F3}')
    a('s_lshl_b32 s18, s25, 7'); a(f's_add_u32 s18, s18, {FD}')
    a('s_lshl_b32 s19, s27, 7'); a(f's_add_u32 s19, s19, {FG}')
    a('s_waitcnt vmcnt(0)'); a('s_barrier')
    set_flags(a, ['s17'])
    a.stamp(6)
    poll(a, [('s18', 32), ('s19', 8)], wave=7)
    a('s_mul_i32 s15, s25, 102400'); a('s_add_u32 s15, s15, s9'); a(f's_add_u32 s15, s15, {WO}')
    dma_rounds(a, 0, 13, 15, 100)
    a('s_lshl_b32 s30, s24, 2'); a('s_add_u32 s30, s30, s29')
    a('s_mul_i32 s31, s30, 20480')
    a('v_mul_u32_u24 v246, 1280, v240'); a('v_lshl_add_u32 v247, v241, 3, v246'); a('v_lshl_add_u32 v246, v241, 4, v246')
    a('v_lshrrev_b32 v248, 1, v241'); a('v_lshlrev_b32 v248, 8, v248'); a('v_lshl_add_u32 v248, v240, 4, v248'); a('v_and_b32 v249, 1, v241'); a('v_lshl_add_u32 v248, v249, 3, v248')
    a('s_mul_i32 s59, s25, 160'); a('s_add_u32 s59, s59, s31')
    XR = 8
    a(f'buffer_load_dwordx4 v[{XR}:{XR+3}], v246, s[32:35], s59 offen'); a(f'buffer_load_dwordx4 v[{XR+4}:{XR+7}], v246, s[32:35], s59 offen offset:64')
    a(f'buffer_load_dwordx2 v[{XR+8}:{XR+9}], v247, s[32:35], s59 offen offset:128')
    a('s_mul_i32 s17, s28, 5120'); a('v_add_u32 v2, s17, v1'); a('v_add_u32 v3, 0x10000, v2'); a('v_add_u32 v4, 0x20000, v2')
    a('v_mov_b32 v251, v2'); a('v_mov_b32 v252, v3'); a('v_mov_b32 v253, v4')
    a('s_mul_i32 s12, s28, 10240'); a('s_add_u32 s12, s12, s31'); a(f's_add_u32 s12, s12, {O_}')
    a('s_lshr_b32 s17, s24, 1'); a('s_lshl_b32 s17, s17, 7'); a(f's_add_u32 s17, s17, {F3}')
    poll(a, [('s17', 16)], wave=7)
    a.stamp(7)
    vA3, vB3, vacc3 = 48, 88, 148
    gemm_main(a, 1, 5, 10, 1, 10, 2, 104, vA3, 10, vB3, vacc3, 1, [251, 252], [12], 15, 9, NTD=10, pre_rounds=13, asc='sc1')
    a.stamp(8)
    def epi35(is3, vacc, xreg):
        L1 = newlbl('Lwk1'); Ld = newlbl('Lwkd')
        a('s_mul_i32 s17, s29, 5120'); a(f's_add_u32 s17, s17, {xreg}'); a('v_add_u32 v5, s17, v1')
        a('v_lshlrev_b32 v6, 5, v241'); a(f'v_add_u32 v6, {TAB + (0 if is3 else 320)}, v6'); a('v_lshlrev_b32 v7, 4, v241'); a(f'v_add_u32 v7, {TAB + (0 if is3 else 320) + 256}, v7')
        if not is3: a('s_barrier')
        a('s_cmp_eq_u32 s28, 0'); a(f's_cbranch_scc1 {L1}')
        for t in range(5): a(f'ds_write_b128 v5, v[{vacc+4*t}:{vacc+4*t+3}] offset:{1024*t}')
        a.label(L1)
        G = 20
        for t in range(4): a(f'ds_read_b128 v[{G+4*t}:{G+4*t+3}], v6 offset:{(t >> 1)*128 + (t & 1)*16}')
        a(f'ds_read_b128 v[{G+16}:{G+19}], v7')
        a('s_waitcnt lgkmcnt(0)'); a('s_barrier')
        return G
    G = epi35(True, vacc3, X3)
    a('s_mul_i32 s15, s27, 143360'); a('s_add_u32 s15, s15, s9'); a(f's_add_u32 s15, s15, {WGU}')
    a('s_cmp_eq_u32 s28, 1'); a('s_cbranch_scc1 L3_wk1')
    def resid_epi(is3, vacc, G):
        T = 48; Xc = 68
        for t in range(5): a(f'ds_read_b128 v[{Xc+4*t}:{Xc+4*t+3}], v5 offset:{1024*t}')
        a('s_waitcnt vmcnt(0)')
        for j in range(10): unpack(a, T + 2 * j, T + 2 * j + 1, XR + j)
        for t in range(5):
            a(f's_waitcnt lgkmcnt({4-t})')
            for h in range(2): a(f'v_pk_add_f32 v[{vacc+4*t+2*h}:{vacc+4*t+2*h+1}], v[{vacc+4*t+2*h}:{vacc+4*t+2*h+1}], v[{Xc+4*t+2*h}:{Xc+4*t+2*h+1}]')
        for j in range(10): a(f'v_pk_fma_f32 v[{T+2*j}:{T+2*j+1}], v[{vacc+2*j}:{vacc+2*j+1}], v[{G+2*j}:{G+2*j+1}], v[{T+2*j}:{T+2*j+1}]')
        for j in range(10): a(f'v_cvt_pk_bf16_f32 v{XR+j}, v{T+2*j}, v{T+2*j+1}')
        return T
    T = resid_epi(True, vacc3, G)
    a('s_mul_i32 s17, s25, 2560'); a('s_add_u32 s17, s17, s31'); a(f's_add_u32 s17, s17, {X1}')
    a(f'buffer_store_dwordx4 v[{XR}:{XR+3}], v1, s[4:7], s17 offen sc1'); a(f'buffer_store_dwordx4 v[{XR+4}:{XR+7}], v1, s[4:7], s17 offen offset:1024 sc1')
    a(f'buffer_store_dwordx2 v[{XR+8}:{XR+9}], v248, s[4:7], s17 offen offset:2048 sc1')
    for j in range(10): a(f'v_mov_b32 v{230+j}, v{XR+j}')
    for j in range(10): unpack(a, T + 2 * j, T + 2 * j + 1, XR + j)
    S = 44
    a(f'v_pk_add_f32 v[{S}:{S+1}], v[{T}:{T+1}], v[{T+2}:{T+3}]'); a(f'v_pk_mul_f32 v[{S+2}:{S+3}], v[{T}:{T+1}], v[{T}:{T+1}]')
    a(f'v_pk_fma_f32 v[{S+2}:{S+3}], v[{T+2}:{T+3}], v[{T+2}:{T+3}], v[{S+2}:{S+3}]')
    for j in range(4, 20, 2):
        a(f'v_pk_add_f32 v[{S}:{S+1}], v[{S}:{S+1}], v[{T+j}:{T+j+1}]'); a(f'v_pk_fma_f32 v[{S+2}:{S+3}], v[{T+j}:{T+j+1}], v[{T+j}:{T+j+1}], v[{S+2}:{S+3}]')
    a(f'v_add_f32 v{S}, v{S}, v{S+1}'); a(f'v_add_f32 v{S+1}, v{S+2}, v{S+3}')
    for sw in ('16', '32'):
        a(f'v_mov_b32 v{S+2}, v{S}'); a(f'v_mov_b32 v{S+3}, v{S+1}')
        a(f'v_permlane{sw}_swap_b32 v{S}, v{S+2}'); a(f'v_permlane{sw}_swap_b32 v{S+1}, v{S+3}')
        a(f'v_pk_add_f32 v[{S}:{S+1}], v[{S}:{S+1}], v[{S+2}:{S+3}]')
    a('v_lshlrev_b32 v7, 3, v240')
    a('s_lshl_b32 s17, s30, 10'); a('s_lshl_b32 s18, s25, 7'); a('s_add_u32 s17, s17, s18'); a(f's_add_u32 s17, s17, {ST}')
    a('s_mov_b32 exec_lo, 0xffff'); a('s_mov_b32 exec_hi, 0')
    a(f'buffer_store_dwordx2 v[{S}:{S+1}], v7, s[4:7], s17 offen sc1')
    a('s_mov_b64 exec, -1')
    a('s_waitcnt vmcnt(0)')
    a.label('L3_wk1')
    a('s_lshr_b32 s17, s24, 2'); a('s_lshl_b32 s17, s17, 7'); a('s_and_b32 s18, s24, 3'); a('s_lshl_b32 s18, s18, 5'); a('s_add_u32 s17, s17, s18')
    a('s_lshl_b32 s18, s25, 2'); a('s_add_u32 s17, s17, s18'); a(f's_add_u32 s17, s17, {F4}')
    a('s_barrier')
    set_flags(a, ['s17'])
    a.stamp(9)
    a('s_cmp_ge_u32 s27, 31'); a('s_cbranch_scc1 L4_skip')
    a('s_cmp_ge_u32 s8, 4'); a('s_cbranch_scc1 L4_nocs')
    a('v_lshlrev_b32 v5, 2, v250'); a('s_lshl_b32 s17, s27, 13'); a(f's_add_u32 s17, s17, {CSP}'); a('s_add_u32 s18, s17, 4096')
    for j in range(8): a(f'buffer_load_dword v{8+j}, v5, s[4:7], s{17 + (j >> 2)} offen offset:{1024*(j & 3)} sc1')
    a.label('L4_nocs')
    dma_rounds(a, 0, 18, 15, 140)
    a('s_cmp_ge_u32 s8, 4'); a('s_cbranch_scc1 L4_nocs2')
    a('s_waitcnt vmcnt(18)')
    for st_ in (4, 2, 1):
        for j in range(st_): a(f'v_add_f32 v{8+j}, v{8+j}, v{8+j+st_}')
    a(f'v_add_u32 v5, {CST}, v5'); a('ds_write_b32 v5, v8')
    a.label('L4_nocs2')
    PF, PF0, CK, LD = p4
    a('v_add_u32 v2, 0x10000, v1'); a('v_add_u32 v3, 0x20000, v1'); a('v_mov_b32 v254, v2'); a('v_mov_b32 v255, v3')
    a('s_lshl_b32 s16, s26, 4'); a('s_lshl_b32 s12, s8, 1'); a('s_add_u32 s16, s16, s12')
    a('s_mul_i32 s12, s16, 20480'); a(f's_add_u32 s12, s12, {X1}'); a('s_add_u32 s13, s12, 20480')
    a('s_lshl_b32 s17, s26, 7'); a(f's_add_u32 s17, s17, {F4}')
    poll(a, [('s17', 32)], wave=7)
    a.stamp(10)
    APOOL = PF + 2
    vST = 8
    vA = 16; vB = vA + APOOL * 8; vacc = vB + (LD + 1) * 28
    assert vacc + 56 <= 230, vacc
    def late(extra):
        a('v_lshlrev_b32 v6, 8, v241'); a('v_lshl_add_u32 v6, v240, 3, v6')
        a('s_lshl_b32 s17, s16, 10'); a(f's_add_u32 s17, s17, {ST}')
        for m in range(2):
            for h in range(2): a(f'buffer_load_dwordx2 v[{vST+4*m+2*h}:{vST+4*m+2*h+1}], v6, s[4:7], s17 offen offset:{1024*m + 128*h} sc1')
        extra(4)
        a('v_lshlrev_b32 v7, 4, v241'); a(f'v_add_u32 v7, {CST}, v7')
    gemm_main(a, 2, 7, 20, CK, PF, LD, 144, vA, APOOL, vB, vacc, 1, [1, 254, 255], [12, 13], 15, 9, inject={8: late}, PF0=PF0, pre_rounds=18, asc='sc1')
    a.stamp(11)
    CS = vA
    for t in range(7):
        a(f'ds_read_b128 v[{CS+8*t}:{CS+8*t+3}], v7 offset:{64*t}'); a(f'ds_read_b128 v[{CS+8*t+4}:{CS+8*t+7}], v7 offset:{512+64*t}')
    C1 = -2.0 * 0.7978845608028654 * LOG2E
    a(f's_mov_b32 s20, {f2u(C1)}'); a(f's_mov_b32 s21, {f2u(C1)}'); a(f's_mov_b32 s22, {f2u(C1 * 0.044715)}'); a(f's_mov_b32 s23, {f2u(C1 * 0.044715)}')
    a('s_mul_i32 s17, s16, 57344'); a('s_mul_i32 s18, s27, 1792'); a('s_add_u32 s17, s17, s18'); a(f's_add_u32 s17, s17, {ACT}'); a('s_add_u32 s18, s17, 57344')
    a('v_lshlrev_b32 v6, 4, v240'); a('v_lshl_add_u32 v6, v241, 2, v6')
    a('s_waitcnt vmcnt(0)')
    for m in range(2):
        b = vST + 4 * m
        a(f'v_pk_add_f32 v[{b}:{b+1}], v[{b}:{b+1}], v[{b+2}:{b+3}]')
    for sw in ('16', '32'):
        for m in range(2):
            b = vST + 4 * m
            a(f'v_mov_b32 v{b+2}, v{b}'); a(f'v_mov_b32 v{b+3}, v{b+1}')
        for m in range(2):
            b = vST + 4 * m
            a(f'v_permlane{sw}_swap_b32 v{b}, v{b+2}'); a(f'v_permlane{sw}_swap_b32 v{b+1}, v{b+3}')
        for m in range(2):
            b = vST + 4 * m
            a(f'v_pk_add_f32 v[{b}:{b+1}], v[{b}:{b+1}], v[{b+2}:{b+3}]')
    def both(fmt):
        for m in range(2): a(fmt.format(b=vST + 4 * m, b1=vST + 4 * m + 1))
    both('v_mul_f32 v{b}, ' + f2u(1/640) + ', v{b}'); both('v_mul_f32 v{b1}, ' + f2u(1/640) + ', v{b1}')
    both('v_fma_f32 v{b1}, -v{b}, v{b}, v{b1}'); both('v_max_f32 v{b1}, 0, v{b1}'); both('v_add_f32 v{b1}, ' + f2u(1e-5) + ', v{b1}')
    both('v_rsq_f32 v{b1}, v{b1}'); both('v_mul_f32 v{b}, v{b}, v{b1}')
    a('s_waitcnt lgkmcnt(0)')
    Y = vB; Z = vB + 28; OUT = vB + 44
    assert OUT % 4 == 0
    for m in range(2):
        b = vST + 4 * m
        for t in range(7):
            for h in range(2):
                a(f'v_pk_fma_f32 v[{Y+4*t+2*h}:{Y+4*t+2*h+1}], v[{b}:{b+1}], v[{CS+8*t+2*h}:{CS+8*t+2*h+1}], v[{CS+8*t+4+2*h}:{CS+8*t+5+2*h}] op_sel_hi:[0,1,1] neg_lo:[1,0,0] neg_hi:[1,0,0]')
        for t in range(7):
            d = vacc + (m * 7 + t) * 4
            for h in range(2):
                a(f'v_pk_fma_f32 v[{Y+4*t+2*h}:{Y+4*t+2*h+1}], v[{b}:{b+1}], v[{d+2*h}:{d+2*h+1}], v[{Y+4*t+2*h}:{Y+4*t+2*h+1}] op_sel:[1,0,0] op_sel_hi:[1,1,1]')
        for t in range(7): a(f'v_pk_mul_f32 v[{Z+2*t}:{Z+2*t+1}], v[{Y+4*t}:{Y+4*t+1}], v[{Y+4*t}:{Y+4*t+1}]')
        for t in range(7): a(f'v_pk_mul_f32 v[{Z+2*t}:{Z+2*t+1}], v[{Z+2*t}:{Z+2*t+1}], s[22:23]')
        for t in range(7): a(f'v_pk_add_f32 v[{Z+2*t}:{Z+2*t+1}], v[{Z+2*t}:{Z+2*t+1}], s[20:21]')
        for t in range(7): a(f'v_pk_mul_f32 v[{Z+2*t}:{Z+2*t+1}], v[{Z+2*t}:{Z+2*t+1}], v[{Y+4*t}:{Y+4*t+1}]')
        for j in range(14): a(f'v_exp_f32 v{Z+j}, v{Z+j}')
        for t in range(7): a(f'v_pk_mul_f32 v[{Y+4*t}:{Y+4*t+1}], v[{Y+4*t}:{Y+4*t+1}], v[{Y+4*t+2}:{Y+4*t+3}]')
        for t in range(7): a(f'v_pk_add_f32 v[{Z+2*t}:{Z+2*t+1}], v[{Z+2*t}:{Z+2*t+1}], 1.0 op_sel_hi:[1,0]')
        for j in range(14): a(f'v_rcp_f32 v{Z+j}, v{Z+j}')
        for t in range(7): a(f'v_pk_mul_f32 v[{Y+4*t}:{Y+4*t+1}], v[{Y+4*t}:{Y+4*t+1}], v[{Z+2*t}:{Z+2*t+1}]')
        for t in range(7): a(f'v_cvt_pk_bf16_f32 v{OUT+t}, v{Y+4*t}, v{Y+4*t+1}')
        a(f'buffer_store_dwordx4 v[{OUT}:{OUT+3}], v1, s[4:7], s{17+m} offen sc1')
        for q in range(3): a(f'buffer_store_dword v{OUT+4+q}, v6, s[4:7], s{17+m} offen offset:{1024+256*q} sc1')
    a('s_lshl_b32 s17, s26, 7'); a('s_lshl_b32 s18, s27, 2'); a('s_add_u32 s17, s17, s18'); a(f's_add_u32 s17, s17, {F5}')
    a('s_waitcnt vmcnt(0)'); a('s_barrier')
    set_flags(a, ['s17'])
    a.label('L4_skip')
    a.stamp(12)
    PF, PF0, CK, LD = p5
    a('s_mul_i32 s15, s25, 276480'); a('s_add_u32 s15, s15, s9'); a(f's_add_u32 s15, s15, {WD}')
    dma_rounds(a, 0, 15, 15, 120)
    a('s_mul_i32 s12, s30, 57344'); a('s_mul_i32 s17, s28, 27648'); a('s_add_u32 s12, s12, s17'); a(f's_add_u32 s12, s12, {ACT}')
    for j in range(10): a(f'v_mov_b32 v{XR+j}, v{230+j}')
    a('s_lshr_b32 s17, s24, 2'); a('s_lshl_b32 s17, s17, 7'); a(f's_add_u32 s17, s17, {F5}')
    poll(a, [('s17', 31)], wave=7)
    a.stamp(13)
    APOOL = PF + 2
    vA5 = 48; vB5 = max(88, vA5 + APOOL * 4); vacc5 = vB5 + (LD + 1) * 20
    gemm_main(a, 1, 5, 27, CK, PF, LD, 120, vA5, APOOL, vB5, vacc5, 1, [251, 252, 253], [12], 15, 9, NTD=10, pre_rounds=15, asc='sc1', PF0=PF0, PFB=11)
    a.stamp(14)
    G = epi35(False, vacc5, 0)
    a('s_cmp_eq_u32 s28, 1'); a('s_cbranch_scc1 LM_end')
    resid_epi(False, vacc5, G)
    a(f'buffer_store_dwordx4 v[{XR}:{XR+3}], v246, s[36:39], s59 offen'); a(f'buffer_store_dwordx4 v[{XR+4}:{XR+7}], v246, s[36:39], s59 offen offset:64')
    a(f'buffer_store_dwordx2 v[{XR+8}:{XR+9}], v247, s[36:39], s59 offen offset:128')
    a.label('LM_end')
    a('s_endpgm')
    return K

HEADER = open('adaLN_cond__linear_kernel_hedgehog__geglu_ffn__prompt.s.ref').read().split('; Override launch')[0]
def emit(kernels, path, order=None):
    order = order or kernels
    out = HEADER
    for k in order:
        out += f'; @launch kernel={k.name} grid=({k.grid},1,1) block=({k.block},1,1) lds={k.lds}\n'
    out += '.amdgcn_target "amdgcn-amd-amdhsa--gfx950"\n.text\n'
    for k in kernels: out += k.text()
    out += '.section .rodata,"a"\n'
    for k in kernels: out += k.desc()
    open(path, 'w').write(out)

def build_all(**kw):
    C.KIDX[0] = 0; _lbl[0] = 0
    return [k1(), mega(**kw)]

if __name__ == '__main__':
    C.INSTR = (len(sys.argv) > 2 and sys.argv[2] == 'i')
    ks = build_all()
    path = sys.argv[1] if len(sys.argv) > 1 else 'adaLN_cond__linear_kernel_hedgehog__geglu_ffn__prompt.s'
    emit(ks, path)
    for k in ks: print(k.name, k.a.max_regs(), 'instrs', sum(1 for l in k.a.lines if not isinstance(l, str)), 'lds', k.lds)
```

```python
import sys
sys.path.insert(0, 'gen')
import common as C
from common import *

FL  = 0x60000
F2, F3, F4, F5, FG, FD = FL, FL + 0x800, FL + 0x1000, FL + 0x1400, FL + 0x1800, FL + 0x3800
CSP = 0x2200000
SPIN_MAX = 400000
NRAW1 = 10
NSC0 = 4
CODE_PF = True

class MAsm(Asm):
    kidx = 0
    def __call__(self, text):
        if C.INSTR and text.strip() == 's_endpgm':
            c = super().__call__
            c('s_waitcnt vmcnt(0) lgkmcnt(0)')
            c('s_memrealtime s[98:99]'); c('s_load_dwordx2 s[94:95], s[0:1], 96')
            c(f's_add_u32 s97, s2, {self.kidx * 1024}'); c('s_lshl_b32 s97, s97, 3'); c('s_add_u32 s97, s97, s96'); c('s_lshl_b32 s97, s97, 7')
            c(f's_add_u32 s97, s97, {TS}')
            c('s_mov_b64 exec, 1')
            c('s_waitcnt lgkmcnt(0)'); c('s_mov_b32 s93, s98')
            c('v_mov_b32 v0, s97')
            for q in range(6):
                for j in range(4): c(f'v_mov_b32 v{4+j}, s{70+4*q+j}')
                c(f'global_store_dwordx4 v0, v[4:7], s[94:95] offset:{16*q}')
        super().__call__(text)
    def stamp(self, i):
        if C.INSTR:
            c = super().__call__
            c('s_memrealtime s[98:99]'); c('s_waitcnt lgkmcnt(0)'); c(f's_mov_b32 s{70+i}, s98')
class MKernel(Kernel):
    def __init__(self, name, grid, block, lds):
        self.name, self.grid, self.block, self.lds = name, grid, block, lds
        self.a = MAsm(); self.a.kidx = C.KIDX[0]; C.KIDX[0] += 1
        if C.INSTR:
            self.a('v_lshrrev_b32 v1, 6, v0'); self.a('v_readfirstlane_b32 s96, v1')
            for i in range(1, 24): self.a(f's_mov_b32 s{70+i}, 0')
            self.a.stamp(0)

def sel_frags(a, vd, vsrc, vg, tmp, n, step, one='bf16'):
    a(f'v_lshlrev_b32 v{tmp}, 3, v{vg}')
    a(f'v_sub_u32 v{tmp}, v{vsrc}, v{tmp}')
    a(f'v_mov_b32 v{tmp+1}, 0x3f80'); a(f'v_mov_b32 v{tmp+2}, 0x3f800000')
    for q in range(n):
        for jj in range(4):
            d = vd + 4 * q + jj
            a(f'v_cmp_eq_u32 vcc, {2*jj - q*step}, v{tmp}')
            a(f'v_cmp_eq_u32 s[56:57], {2*jj + 1 - q*step}, v{tmp}')
            a(f'v_cndmask_b32 v{d}, 0, v{tmp+1}, vcc')
            a(f'v_cndmask_b32 v{d}, v{d}, v{tmp+2}, s[56:57]')

def dpp_sum16(a, r):
    for sh in (8, 4, 2, 1):
        a(f'v_add_f32_dpp v{r}, v{r}, v{r} row_ror:{sh} row_mask:0xf bank_mask:0xf')

def sum4_round(a, b, add=None):
    for j in range(4): a(f'v_add_f32 v{b+j}, v{b+j}, v{b+4+j}')
    for j in range(4): a(f'v_add_f32 v{b+8+j}, v{b+8+j}, v{b+12+j}')
    for j in range(4): a(f'v_add_f32 v{b+j}, v{b+j}, v{b+8+j}')
    for h in range(2): a(f'v_cvt_pk_bf16_f32 v{b+4+h}, v{b+2*h}, v{b+2*h+1}')
    for h in range(2): unpack(a, b + 2 * h, b + 2 * h + 1, b + 4 + h)
    if add is not None:
        for j in range(4): a(f'v_add_f32 v{b+j}, {add}, v{b+j}')
        for h in range(2): a(f'v_cvt_pk_bf16_f32 v{b+4+h}, v{b+2*h}, v{b+2*h+1}')
        for h in range(2): unpack(a, b + 2 * h, b + 2 * h + 1, b + 4 + h)

N_FOLD, N_WGU, N_WD, N_WO, N_LN, N_MOD = 120, 0, 12, 40, 128, 240
K1SC = ''
def k1():
    B_WGU = N_FOLD; B_WD = B_WGU + N_WGU; B_WO = B_WD + N_WD; B_LN = B_WO + N_WO; B_MOD = B_LN + N_LN; B_Z = B_MOD + N_MOD; NB = B_Z + 1
    K = MKernel('k1_kernel', NB, 256, 24576); a = K.a
    a(f's_cmp_ge_u32 s2, {NB}'); a('s_cbranch_scc1 L1_end')
    a(f's_cmp_ge_u32 s2, {B_MOD}'); a('s_cbranch_scc0 L1_notmod')
    K.srd([('wmod', 4), ('c', 8), ('ws', 12)])
    a(f's_cmp_eq_u32 s2, {B_Z}'); a('s_cbranch_scc1 L1_zero')
    a(f's_sub_u32 s23, s2, {B_MOD}')
    a('s_mul_i32 s24, s23, 1093'); a('s_lshr_b32 s24, s24, 16')
    a('s_mul_i32 s25, s24, 60'); a('s_sub_u32 s25, s23, s25')
    a('v_and_b32 v1, 7, v0'); a('v_lshrrev_b32 v2, 3, v0')
    a('v_mul_u32_u24 v3, 7680, v2'); a('v_lshl_add_u32 v3, v1, 4, v3')
    a('v_lshlrev_b32 v4, 1, v2')
    a('s_mul_i32 s26, s24, 1228800'); a('s_lshl_b32 s27, s25, 7'); a('s_add_u32 s26, s26, s27')
    a('s_mul_i32 s27, s24, 320')
    a('s_waitcnt lgkmcnt(0)')
    for i in range(5): a(f'buffer_load_ushort v{10+i}, v4, s[8:11], s27 offen offset:{64*i}')
    for i in range(5):
        a(f'buffer_load_dwordx4 v[{16+4*i}:{19+4*i}], v3, s[4:7], s26 offen')
        if i < 4: a('s_add_u32 s26, s26, 245760')
    for j in range(8): a(f'v_mov_b32 v{40+j}, 0')
    a('v_lshlrev_b32 v5, 8, v2'); a('v_lshl_add_u32 v5, v1, 5, v5')
    a('s_waitcnt vmcnt(5)')
    for i in range(5): a(f'v_lshlrev_b32 v{10+i}, 16, v{10+i}')
    for i in range(5): a(f'v_mul_f32 v{50+i}, {f2u(-LOG2E)}, v{10+i}')
    for i in range(5): a(f'v_exp_f32 v{50+i}, v{50+i}')
    for i in range(5): a(f'v_add_f32 v{50+i}, 1.0, v{50+i}')
    for i in range(5): a(f'v_rcp_f32 v{50+i}, v{50+i}')
    for i in range(5): a(f'v_mul_f32 v{10+i}, v{10+i}, v{50+i}')
    for i in range(5): a(f'v_cvt_pk_bf16_f32 v{10+i}, v{10+i}, v{10+i}')
    for i in range(5): a(f'v_lshlrev_b32 v{10+i}, 16, v{10+i}')
    for i in range(5):
        a(f's_waitcnt vmcnt({4-i})')
        for j in range(4): unpack(a, 56 + 2 * j, 57 + 2 * j, 16 + 4 * i + j)
        for j in range(8): a(f'v_fmac_f32 v{40+j}, v{56+j}, v{10+i}')
    a('ds_write_b128 v5, v[40:43]'); a('ds_write_b128 v5, v[44:47] offset:16')
    a('s_mul_i32 s26, s24, 15360'); a('s_lshl_b32 s27, s25, 8'); a('s_add_u32 s26, s26, s27')
    a('v_readfirstlane_b32 s28, v0')
    a('s_waitcnt lgkmcnt(0)'); a('s_barrier')
    a('s_cmp_ge_u32 s28, 64'); a('s_cbranch_scc1 L1_end')
    a('v_lshlrev_b32 v5, 2, v0')
    for r in range(32): a(f'ds_read_b32 v{10+r}, v5 offset:{256*r}')
    a('s_waitcnt lgkmcnt(0)')
    for st_ in (16, 8, 4, 2, 1):
        for r in range(st_): a(f'v_add_f32 v{10+r}, v{10+r}, v{10+r+st_}')
    a(f'buffer_store_dword v10, v5, s[12:15], s26 offen offset:{MODP}')
    a('s_endpgm')
    a.label('L1_zero')
    a('v_lshlrev_b32 v1, 4, v0')
    for j in range(4): a(f'v_mov_b32 v{4+j}, 0')
    a('s_waitcnt lgkmcnt(0)')
    for q in range(4):
        a(f's_mov_b32 s20, {FL + 4096*q}'); a('buffer_store_dwordx4 v[4:7], v1, s[12:15], s20 offen')
    a('s_endpgm')
    a.label('L1_notmod')
    a(f's_cmp_ge_u32 s2, {B_LN}'); a('s_cbranch_scc0 L1_fold')
    K.srd([('x', 4), ('ws', 8)])
    a('v_and_b32 v1, 15, v0'); a('v_lshrrev_b32 v2, 4, v0')
    a('v_mul_u32_u24 v3, 1280, v2'); a('v_lshl_add_u32 v3, v1, 4, v3')
    a(f's_sub_u32 s12, s2, {B_LN}'); a('s_mul_i32 s12, s12, 20480')
    a('s_waitcnt lgkmcnt(0)')
    for i in range(5): a(f'buffer_load_dwordx4 v[{20+4*i}:{23+4*i}], v3, s[4:7], s12 offen offset:{256*i}')
    a('v_lshrrev_b32 v10, 2, v1'); a('v_lshlrev_b32 v10, 10, v10'); a('v_and_b32 v11, 3, v1')
    a('v_lshl_add_u32 v10, v11, 8, v10'); a('v_lshl_add_u32 v10, v2, 4, v10')
    a(f's_add_u32 s12, s12, {H1}')
    for i in range(5):
        a(f's_waitcnt vmcnt({4-i})')
        for j in range(4): unpack(a, 80 + 8 * i + 2 * j, 81 + 8 * i + 2 * j, 20 + 4 * i + j)
        if i == 0:
            for j in range(4): a(f'v_add_f32 v{4+j}, v{80+j}, v{84+j}')
        else:
            for j in range(8): a(f'v_add_f32 v{4+(j&3)}, v{4+(j&3)}, v{80+8*i+j}')
    a('v_add_f32 v4, v4, v5'); a('v_add_f32 v6, v6, v7'); a('v_add_f32 v4, v4, v6')
    dpp_sum16(a, 4)
    a(f'v_mul_f32 v4, {f2u(1/640)}, v4')
    for i in range(40): a(f'v_sub_f32 v{80+i}, v{80+i}, v4')
    for j in range(4): a(f'v_mul_f32 v{12+j}, v{80+j}, v{80+j}')
    for i in range(4, 40): a(f'v_fmac_f32 v{12+(i&3)}, v{80+i}, v{80+i}')
    a('v_add_f32 v12, v12, v13'); a('v_add_f32 v14, v14, v15'); a('v_add_f32 v12, v12, v14')
    dpp_sum16(a, 12)
    a(f'v_mov_b32 v8, {f2u(1e-5)}'); a(f'v_fmac_f32 v8, {f2u(1/640)}, v12'); a('v_rsq_f32 v8, v8')
    for i in range(5):
        for j in range(8): a(f'v_mul_f32 v{80+8*i+j}, v{80+8*i+j}, v8')
        o = 20 + 4 * i
        for jj in range(4): a(f'v_cvt_pk_f16_f32 v{o+jj}, v{80+8*i+2*jj}, v{81+8*i+2*jj}')
        a(f'buffer_store_dwordx4 v[{o}:{o+3}], v10, s[8:11], s12 offen')
        if i < 4: a('s_add_u32 s12, s12, 4096')
    a('s_endpgm')
    a.label('L1_fold')
    K.srd([('ws', 4), ('wqkv', 20), ('wphi', 24), ('wo', 12), ('wd', 16)])
    a('v_lshrrev_b32 v1, 6, v0'); a('v_readfirstlane_b32 s8, v1')
    a('v_and_b32 v0, 63, v0')
    a('v_and_b32 v1, 15, v0'); a('v_lshrrev_b32 v2, 4, v0')
    a('v_lshrrev_b32 v3, 2, v1'); a('v_and_b32 v4, 3, v1')
    a('v_lshl_add_u32 v5, v3, 3, v4')
    a('v_lshlrev_b32 v10, 4, v0')
    a(f's_cmp_lt_u32 s2, {B_WGU}'); a('s_cbranch_scc1 L1_fold2')
    a('s_lshl_b32 s28, s8, 2'); a('v_add_u32 v6, s28, v2'); a('v_xor_b32 v6, v6, v1'); a('v_lshlrev_b32 v6, 4, v6')
    a('s_lshl_b32 s35, s8, 10')
    def lds_a_addr(dst, sP, cb, aa, clamp):
        if clamp: a(f'v_and_b32 v{dst}, 1, v2'); a(f'v_add_u32 v{dst}, {sP}, v{dst}')
        else: a(f'v_add_u32 v{dst}, {sP}, v2')
        if cb: a(f'v_add_u32 v{dst}, {4*cb}, v{dst}')
        a(f'v_add_u32 v8, {4*aa}, v5'); a(f'v_xor_b32 v9, v8, v{dst}'); a('v_and_b32 v9, 15, v9')
        a(f'v_lshrrev_b32 v{dst}, 4, v{dst}'); a(f'v_lshlrev_b32 v{dst}, 13, v{dst}')
        a(f'v_lshl_add_u32 v{dst}, v8, 8, v{dst}'); a(f'v_lshl_add_u32 v{dst}, v9, 4, v{dst}')
    a('s_waitcnt lgkmcnt(0)')
    a(f's_cmp_ge_u32 s2, {B_WO}')
    a('s_cselect_b32 s40, s12, s16'); a('s_cselect_b32 s41, s13, s17'); a(f's_cselect_b32 s42, {SZ["wo"]}, s18'); a('s_mov_b32 s43, 0x20000')
    a(f's_cselect_b32 s28, {N_WD}, -96'); a('s_cselect_b32 s36, 10, 27'); a('s_cselect_b32 s37, 0, 170'); a(f's_cselect_b32 s38, 0, {WD - WO}')
    a('s_add_u32 s37, s37, 100')
    a('s_sub_u32 s28, s2, s28'); a(f's_sub_u32 s28, s28, {B_WD}'); a('s_and_b32 s29, s28, 1'); a('s_lshr_b32 s28, s28, 1')
    a('v_mul_u32_u24 v7, 1280, v2'); a('v_add_u32 v6, v6, v7')
    a('s_mul_i32 s30, s28, 40960'); a('s_mul_i32 s31, s29, 640'); a('s_add_u32 s30, s30, s31'); a('s_mul_i32 s31, s8, 5120'); a('s_add_u32 s30, s30, s31')
    a('s_add_u32 s31, s30, 20480')
    for cbk in range(3):
        for h in range(2):
            a(f's_add_u32 m0, s35, {cbk*8192 + h*4096 - cbk*256}')
            a(f'buffer_load_dwordx4 v6, s[40:43], s{30+h} offen offset:{256*cbk} lds')
    sel_frags(a, 16, 5, 2, 12, 2, 4); sel_frags(a, 24, 1, 2, 12, 1, 0)
    a('s_mul_i32 s32, s8, 10')
    for cb in range(3):
        for aa in range(2): lds_a_addr(120 + 2 * cb + aa, 's32', cb, aa, cb == 2)
    a('s_cmp_ge_u32 s28, s36'); a('s_cselect_b32 s18, 1, 0'); a('s_mul_i32 s19, s18, s36'); a('s_sub_u32 s17, s28, s19')
    a('s_lshl_b32 s17, s17, 1'); a('s_add_u32 s17, s17, s18'); a('s_mul_i32 s17, s17, 5')
    a('s_lshl_b32 s33, s29, 2'); a('s_add_u32 s33, s33, s8'); a('s_mul_i32 s18, s33, s37'); a('s_add_u32 s17, s17, s18'); a('s_lshl_b32 s17, s17, 10')
    a('s_add_u32 s17, s17, s38'); a(f's_add_u32 s17, s17, {WO}')
    a('s_waitcnt vmcnt(0)'); a('s_barrier')
    for cb in range(3):
        for aa in range(2):
            r = 40 + 12 * aa + 4 * cb
            a(f'ds_read_b128 v[{r}:{r+3}], v{120+2*cb+aa}')
    a('s_waitcnt lgkmcnt(0)')
    for t in range(5):
        d = 96 + 8 * (t & 1); cb = t >> 1; sel = 16 + 4 * (t & 1) if t < 4 else 24
        for aa in range(2):
            r = 40 + 12 * aa + 4 * cb
            a(f'v_mfma_f32_16x16x32_bf16 v[{d+4*aa}:{d+4*aa+3}], v[{r}:{r+3}], v[{sel}:{sel+3}], 0')
        o = 112 + 4 * (t & 1)
        for jj in range(4): a(f'v_cvt_pk_bf16_f32 v{o+jj}, v{d+2*jj}, v{d+2*jj+1}')
        if t == 4: a('s_add_u32 s17, s17, 4096')
        a(f'buffer_store_dwordx4 v[{o}:{o+3}], v10, s[4:7], s17 offen offset:{1024*(t & 3)}')
    a('s_endpgm')
    a.label('L1_fold2')
    a('s_mul_i32 s28, s2, 43'); a('s_lshr_b32 s28, s28, 8')
    a('s_mul_i32 s29, s28, 6'); a('s_sub_u32 s29, s2, s29')
    a('s_lshr_b32 s30, s29, 1'); a('s_and_b32 s29, s29, 1')
    a('s_lshl_b32 s31, s29, 4'); a('s_lshl_b32 s32, s8, 2'); a('s_add_u32 s31, s31, s32')
    a(f'v_mov_b32 v11, {OOB}')
    a('v_mul_u32_u24 v6, 3840, v5'); a('v_lshl_add_u32 v6, v2, 4, v6')
    a('v_cmp_gt_u32 vcc, 3, v2'); a('v_cndmask_b32 v6, v11, v6, vcc')
    a('s_mul_i32 s32, s28, 122880'); a('s_mul_i32 s33, s30, 1280'); a('s_add_u32 s32, s32, s33')
    a('s_mul_i32 s33, s31, 40'); a('s_add_u32 s32, s32, s33'); a('s_add_u32 s33, s32, 15360')
    a('s_mul_i32 s34, s31, 800'); a('s_lshl_b32 s35, s8, 12')
    a('s_waitcnt lgkmcnt(0)')
    a('s_mov_b32 m0, s35')
    for q in range(4): a(f'buffer_load_dwordx4 v10, s[24:27], s34 offen offset:{1024*q} lds')
    for i in range(4):
        for aa in range(2):
            r = 40 + 8 * i + 4 * aa
            a(f'buffer_load_dwordx4 v[{r}:{r+3}], v6, s[20:23], s{32+aa} offen offset:{40*i}')
    a('s_cmp_ge_u32 s28, 10'); a('s_cselect_b32 s36, 1, 0'); a('s_mul_i32 s37, s36, 10'); a('s_sub_u32 s37, s28, s37')
    a('s_lshl_b32 s37, s37, 1'); a('s_add_u32 s37, s37, s36'); a('s_lshl_b32 s37, s37, 13')
    a('s_lshr_b32 s36, s31, 1'); a('s_mul_i32 s36, s36, 163840'); a('s_add_u32 s37, s37, s36'); a(f's_add_u32 s37, s37, {WQKV}')
    a('s_add_u32 s38, s37, 163840')
    a('v_cmp_eq_u32 s[46:47], 2, v2')
    a('s_cmp_eq_u32 s30, 2'); a('s_cbranch_scc1 L1_v')
    a('s_lshl_b32 s39, s30, 6')
    a('v_lshlrev_b32 v20, 10, v3'); a('v_lshl_add_u32 v20, v2, 8, v20'); a('v_lshl_add_u32 v20, v4, 4, v20'); a('v_add_u32 v20, s39, v20')
    a('v_add_u32 v21, 4096, v20'); a('v_cmp_gt_u32 vcc, 4, v1'); a('v_cndmask_b32 v21, v11, v21, vcc')
    a('v_add_u32 v22, 128, v20'); a('v_add_u32 v23, 128, v21')
    a('v_lshl_add_u32 v7, v2, 3, v3'); a('v_mul_u32_u24 v7, 40, v7'); a('v_lshl_add_u32 v7, v4, 3, v7'); a('v_add_u32 v7, s35, v7')
    a('s_waitcnt vmcnt(8)')
    for i in range(4):
        for nt in range(2):
            for hh in range(2):
                r = 72 + 8 * i + 4 * nt + 2 * hh
                a(f'ds_read_b64_tr_b16 v[{r}:{r+1}], v7 offset:{800*i + 160*hh + 32*nt}')
    a('s_branch L1_mm')
    a.label('L1_v')
    a('v_add_u32 v7, 16, v1'); a('v_cmp_gt_u32 vcc, 4, v1'); a('v_mov_b32 v8, 100'); a('v_cndmask_b32 v7, v8, v7, vcc')
    sel_frags(a, 72, 1, 2, 24, 1, 0); sel_frags(a, 76, 7, 2, 24, 1, 0)
    for i in range(1, 4):
        for j in range(8): a(f'v_mov_b32 v{72+8*i+j}, v{72+j}')
    a('v_lshlrev_b32 v20, 8, v2'); a('v_lshl_add_u32 v20, v1, 4, v20')
    a('v_add_u32 v21, 6144, v20'); a('v_cmp_gt_u32 vcc, 8, v1'); a('v_cndmask_b32 v21, v11, v21, vcc')
    a('v_add_u32 v22, 7168, v20'); a('v_add_u32 v23, 128, v21'); a('v_add_u32 v20, 5120, v20')
    a.label('L1_mm')
    a('s_waitcnt vmcnt(0) lgkmcnt(0)')
    for i in range(4):
        for aa in range(2):
            r = 40 + 8 * i + 4 * aa
            a(f'v_cndmask_b32 v{r+2}, v{r+2}, 0, s[46:47]'); a(f'v_cndmask_b32 v{r+3}, v{r+3}, 0, s[46:47]')
    for i in range(4):
        for nt in range(2):
            for aa in range(2):
                r = 40 + 8 * i + 4 * aa; d = 104 + 8 * nt + 4 * aa; b = 72 + 8 * i + 4 * nt
                a(f'v_mfma_f32_16x16x32_bf16 v[{d}:{d+3}], v[{r}:{r+3}], v[{b}:{b+3}], 0')
        for nt in range(2):
            d = 104 + 8 * nt; o = 24 + 4 * nt + 8 * (i & 1)
            for jj in range(4): a(f'v_cvt_pk_bf16_f32 v{o+jj}, v{d+2*jj}, v{d+2*jj+1}')
            a(f'buffer_store_dwordx4 v[{o}:{o+3}], v{20 + 2*(i & 1) + nt}, s[4:7], s{37 + (i >> 1)} offen')
    a.label('L1_end')
    a('s_endpgm')
    return K

def gemm_main(a, MT, NT, KS, CK, PF, LD, ring, vA, APOOL, vB, vacc, vD, vL, sA, sB, sLw,
              NTD=None, orient=None, inject=None, PF0=None, xf=None, pre_rounds=0, asc='', PFB=None, stamps=None):
    W = 8; sWS = 4
    NTD = NTD or NT
    orient = orient or ['T'] * NT
    inject = inject or {}
    PF0 = PF0 or PF
    PFB = PFB or PF
    assert ring % W == 0 and (ring >= KS * NTD or ring % NTD == 0)
    nrounds = (KS * NTD + W - 1) // W
    vm = []
    st = dict(round=pre_rounds, synced=-1, consumed=-1, lds_done=0, issued=0, visible=-1)
    ldsq = []
    def areg(u, m): return vA + ((u % APOOL) * MT + m) * 4
    def breg(u, t): return vB + ((u % (LD + 1)) * NT + t) * 4
    def dma_ops(x):
        ops = []
        last_round = min(nrounds - 1, (NTD * min(x, KS - 1) + NTD - 1) // W)
        while st['round'] <= last_round:
            r = st['round']
            old = r * W + W - 1 - ring
            if old >= 0 and old // NTD > st['consumed']: break
            st['round'] += 1
            def dma(r=r):
                a(f's_add_u32 m0, s{sLw}, {((r * W) % ring) * 1024}')
                a(f'buffer_load_dwordx4 v{vD}, s[{sWS}:{sWS+3}], s{sB} offen lds')
                a(f's_add_u32 s{sB}, s{sB}, {W * 1024}')
                vm.append(('B', (r * W) // NTD, r))
            ops.append(dma)
        return ops
    def a_ops(x):
        ops = []
        for m in range(MT):
            def lda(m=m):
                r = areg(x, m)
                a(f'buffer_load_dwordx4 v[{r}:{r+3}], v{vD}, s[{sWS}:{sWS+3}], s{sA[m]} offen offset:{(x % 4) * 1024} {asc}')
                if x % 4 == 3: a(f's_add_u32 s{sA[m]}, s{sA[m]}, 4096')
                vm.append(('A', x, 0))
            ops.append(lda)
        return ops
    def sync(step, cur, first=False):
        c = step // CK
        if step >= KS or c <= st['synced']: return
        st['synced'] = c
        lim = min(KS, (c + 1) * CK)
        need_round = min(nrounds - 1, (NTD * (lim - 1) + NTD - 1) // W)
        assert st['round'] > need_round, ('B round not issued in time', step, need_round, st['round'])
        last = max(i for i, e in enumerate(vm) if e[1] < lim)
        n = len(vm) - 1 - last
        assert n <= 63
        a(f's_waitcnt vmcnt({n})' + (' lgkmcnt(0)' if first else ''))
        more_dma = st['round'] < nrounds
        if first or need_round > st['visible'] or more_dma:
            a('s_barrier'); st['consumed'] = cur - 1
            done = [e[2] for e in vm[:last + 1] if e[0] == 'B']
            st['visible'] = max([pre_rounds - 1] + done)
    def lds_read(u, t):
        off = ((u * NTD + t) % ring) * 1024
        r = breg(u, t)
        a(f'ds_read_b128 v[{r}:{r+3}], v{vL[off >> 16]} offset:{off & 0xffff}')
        ldsq.append((u, t))
    def g_read(u, q):
        r = xf['vG'] + (u % 2) * 16 + 4 * q
        a(f'ds_read_b128 v[{r}:{r+3}], v{xf["vaddr"]} offset:{xf["off"](u, q)}')
        ldsq.append(('g', u, q))
    def lds_wait(key):
        i = ldsq.index(key)
        if i < st['lds_done']: return
        n = len(ldsq) - 1 - i
        a(f's_waitcnt lgkmcnt({min(n, 15)})')
        st['lds_done'] = len(ldsq) - min(n, 15)
    def vm_extra(n=1):
        for _ in range(n): vm.append(('X', 10**9, 0))
    def xf_ops(u):
        if not xf or u >= KS: return []
        return [lambda: lds_wait(('g', u, 3))] + xf['emit'](u, [areg(u, m) for m in range(MT)], xf['vG'] + (u % 2) * 16)
    for x in range(min(PF0, KS)):
        for op in dma_ops(x) + a_ops(x): op()
    st['issued'] = min(PF0, KS)
    if 'pro' in inject: inject['pro'](vm_extra)
    for u in range(min(LD, KS)):
        if u == 0 and stamps: a.stamp(stamps[0])
        sync(u, 0, first=(u == 0))
        if u == 0 and stamps: a.stamp(stamps[1])
        if u == 0 and xf:
            for uu in range(2):
                for q in range(4): g_read(uu, q)
        for t in range(NT): lds_read(u, t)
    for op in xf_ops(0): op()
    for u in range(KS):
        if stamps and C.INSTR and u == KS // 2: a.stamp(stamps[2]); st['lds_done'] = len(ldsq)
        sync(u + LD, u)
        nm = NT * MT
        pos = {i: [] for i in range(nm)}
        if u + LD < KS:
            for t in range(NT): pos[min(nm - 1, t * MT)].append(lambda t=t: lds_read(u + LD, t))
        vmo = dma_ops(u + PFB)
        cnt = 0
        while st['issued'] < min(KS, u + PF + 1) and cnt < 2:
            vmo += a_ops(st['issued']); st['issued'] += 1; cnt += 1
        if u in inject: vmo.append(lambda: inject[u](vm_extra))
        for j, f in enumerate(vmo): pos[min(nm - 1, (j * nm) // max(1, len(vmo)) + (1 if MT > 1 else 0))].append(f)
        xo = xf_ops(u + 1)
        for j, f in enumerate(xo): pos[min(nm - 1, 1 + (j * (nm - 3)) // max(1, len(xo)))].append(f)
        if xf and u + 2 < KS:
            for q in range(4): pos[nm - 4 + q].append(lambda q=q: g_read(u + 2, q))
        i = 0
        for t in range(NT):
            lds_wait((u, t))
            for m in range(MT):
                d = vacc + (m * NT + t) * 4
                A_, B_ = areg(u, m), breg(u, t)
                x0, x1 = (B_, A_) if orient[t] == 'T' else (A_, B_)
                c = f'v[{d}:{d+3}]' if u else '0'
                a(f'v_mfma_f32_16x16x32_bf16 v[{d}:{d+3}], v[{x0}:{x0+3}], v[{x1}:{x1+3}], {c}')
                for f in pos[i]: f()
                i += 1
    return vm

RING2 = 96
GS = RING2 * 1024; PKB = GS + 5120; PITCH = 176; VB_ = PKB + 128 * PITCH; PQB = VB_ + 12288
TAB = 159744
CST = TAB + 1536
KF = PKB
X3 = PKB
SR = 65536
LDS_TOTAL = 163840
assert PQB + 8 * 2560 + 512 <= TAB and CST + 1024 <= LDS_TOTAL

_lbl = [0]
def newlbl(p):
    _lbl[0] += 1; return f'{p}_{_lbl[0]}'

def flag_store(a, offs):
    a('v_mov_b32 v2, 1'); a('v_mov_b32 v3, 0'); a('s_mov_b64 exec, 1')
    for o in offs: a(f'buffer_store_dword v2, v3, s[4:7], {o} offen sc1')
    a('s_mov_b64 exec, -1')

def set_flags(a, offs, wave=0):
    L = newlbl('Lsf')
    a(f's_cmp_lg_u32 s8, {wave}'); a(f's_cbranch_scc1 {L}')
    flag_store(a, offs)
    a.label(L)

def poll(a, groups, wave=7, barrier=True, pre=''):
    L = newlbl('Lpw')
    a(f's_cmp_lg_u32 s8, {wave}'); a(f's_cbranch_scc1 {L}')
    a('v_lshlrev_b32 v3, 2, v0')
    for so, n in groups:
        Lp = newlbl('Lpl'); Le = newlbl('Lpe')
        m = (1 << n) - 1
        a(f's_mov_b32 exec_lo, {hex(m & 0xffffffff)}'); a(f's_mov_b32 exec_hi, {hex(m >> 32)}'); a('s_mov_b32 s58, 0')
        a.label(Lp)
        a(f'buffer_load_dword v2, v3, s[4:7], {so} offen sc1'); a('s_add_u32 s58, s58, 1')
        a('s_waitcnt vmcnt(0)'); a('v_cmp_eq_u32 vcc, 1, v2')
        a(f's_cmp_gt_u32 s58, {SPIN_MAX}'); a(f's_cbranch_scc1 {Le}')
        a('s_cmp_eq_u64 vcc, exec'); a(f's_cbranch_scc0 {Lp}')
        a.label(Le)
    a('s_mov_b64 exec, -1')
    a.label(L)
    if pre: a(pre)
    if barrier: a('s_barrier')

def dma7(a, sB, nfrags):
    L = newlbl('Ld7')
    a('s_cmp_eq_u32 s8, 7'); a(f's_cbranch_scc1 {L}')
    for r in range((nfrags + 6) // 7):
        if (r + 1) * 7 > nfrags:
            a(f's_cmp_ge_u32 s8, {nfrags - r*7}'); a(f's_cbranch_scc1 {L}')
        a(f's_add_u32 m0, s9, {r * 7168}')
        a(f'buffer_load_dwordx4 v1, s[4:7], s{sB} offen lds')
        a(f's_add_u32 s{sB}, s{sB}, 7168')
    a.label(L)

def touch(a, sbase, first_chunk_code, nch, vP=4, vdst=5):
    for c in first_chunk_code: a(c)
    a('s_lshl_b32 s56, s57, 13'); a(f's_add_u32 s56, s56, {sbase}')
    a(f's_cmp_lt_u32 s57, {nch}'); a(f's_cselect_b32 s56, s56, {OOB}')
    a(f'v_lshlrev_b32 v{vP}, 7, v0')
    a(f'buffer_load_dword v{vdst}, v{vP}, s[4:7], s56 offen')

def mega(p2=(4, 3, 1, 1), p4=(6, 4, 2, 1), p5=(8, 6, 1, 2), t5=False, twd=False):
    K = MKernel('mega_kernel', 256, 512, LDS_TOTAL); a = K.a
    a('s_cmp_ge_u32 s2, 256'); a('s_cbranch_scc1 LM_end')
    K.srd([('ws', 4), ('x', 32), ('out', 36), ('wg', 40), ('wu', 44), ('wd', 48)])
    a('v_lshlrev_b32 v8, 4, v0')
    a('v_mov_b32 v9, 1.0'); a('v_cmp_lt_u32 vcc, 159, v0'); a('v_cndmask_b32 v9, 0, v9, vcc')
    a('v_mov_b32 v250, v0')
    a('v_lshrrev_b32 v1, 6, v0'); a('v_readfirstlane_b32 s8, v1')
    a('v_and_b32 v0, 63, v0'); a('v_lshlrev_b32 v1, 4, v0'); a('s_lshl_b32 s9, s8, 10')
    a('s_bfe_u32 s10, s2, 0x20001'); a('s_lshl_b32 s10, s10, 2'); a('s_bfe_u32 s11, s2, 0x20003'); a('s_add_u32 s10, s10, s11')
    a('s_and_b32 s11, s2, 1'); a('s_lshl_b32 s11, s11, 3'); a('s_lshr_b32 s12, s2, 5'); a('s_add_u32 s11, s11, s12')
    a('s_and_b32 s28, s8, 1'); a('s_lshr_b32 s29, s8, 1')
    PF, PF0, CK, LD = p2
    a('s_lshl_b32 s17, s28, 13'); a('v_add_u32 v2, s17, v1'); a('v_add_u32 v3, 0x10000, v2')
    a('s_lshl_b32 s12, s11, 3'); a('s_add_u32 s13, s12, s8'); a('s_xor_b32 s17, s8, 1'); a('s_add_u32 s17, s12, s17')
    a('s_mul_i32 s18, s28, 10240'); a(f's_add_u32 s18, s18, {H1}')
    a('s_mul_i32 s12, s13, 20480'); a('s_add_u32 s12, s12, s18'); a('s_mul_i32 s13, s17, 20480'); a('s_add_u32 s13, s13, s18')
    a('s_mul_i32 s15, s10, 163840'); a('s_add_u32 s15, s15, s9'); a(f's_add_u32 s15, s15, {WQKV}')
    a(f's_mov_b32 s14, {f2u(LOG2E)}')
    a('v_lshrrev_b32 v4, 4, v0'); a('v_lshlrev_b32 v4, 5, v4'); a('s_mul_i32 s17, s28, 1280'); a('v_add_u32 v4, s17, v4'); a(f'v_add_u32 v4, {GS}, v4')
    a('s_waitcnt lgkmcnt(0)')
    APOOL = PF + 2
    vG = 12; vT = 44; vA = 60; vB = vA + APOOL * 8; vacc = vB + 64
    assert vacc + 64 <= 240
    a('s_cmp_ge_u32 s8, 5'); a('s_cbranch_scc1 L2_nomod')
    for p in range(4):
        a(f's_mov_b32 s17, {MODP + 15360*p}')
        a(f'buffer_load_dwordx4 v[{vG+4*p}:{vG+4*p+3}], v8, s[4:7], s17 offen')
    a.label('L2_nomod')
    def pro(extra):
        a('s_and_b32 s24, s2, 7'); a('s_lshl_b32 s24, s24, 2'); a('s_lshr_b32 s17, s2, 6'); a('s_add_u32 s24, s24, s17')
        a('s_bfe_u32 s25, s2, 0x30003')
        a('s_and_b32 s26, s2, 1'); a('s_lshl_b32 s26, s26, 2'); a('s_bfe_u32 s17, s2, 0x20003'); a('s_add_u32 s26, s26, s17')
        a('s_bfe_u32 s27, s2, 0x20001'); a('s_lshl_b32 s27, s27, 3'); a('s_lshr_b32 s17, s2, 5'); a('s_add_u32 s27, s27, s17')
        a('s_lshr_b32 s52, s8, 2'); a('s_and_b32 s53, s8, 3')
        a('s_lshl_b32 s30, s24, 2'); a('s_add_u32 s30, s30, s53'); a('s_mul_i32 s31, s30, 20480')
        a('s_cmp_lt_u32 s2, 160'); a('s_cselect_b32 s54, 0, 160'); a('s_cselect_b32 s55, 3, 1'); a('s_cselect_b32 s62, 7, 1')
        a('s_sub_u32 s54, s2, s54'); a('s_lshr_b32 s55, s54, s55'); a('s_and_b32 s54, s54, s62')
        a('s_mul_i32 s59, s25, 160'); a('s_add_u32 s59, s59, s31')
        a('s_cmp_ge_u32 s8, 3'); a('s_cselect_b32 s60, 1, 0'); a('s_mul_i32 s61, s60, 3'); a('s_sub_u32 s61, s8, s61')
        a('v_and_b32 v240, 15, v0'); a('v_lshrrev_b32 v241, 4, v0')
        a('v_lshrrev_b32 v242, 2, v240'); a('v_and_b32 v243, 3, v240'); a('v_lshl_add_u32 v244, v242, 3, v243')
        a('v_mul_u32_u24 v246, 1280, v240'); a('v_lshl_add_u32 v247, v241, 3, v246'); a('v_lshl_add_u32 v246, v241, 4, v246')
        a('v_lshrrev_b32 v248, 1, v241'); a('v_lshlrev_b32 v248, 8, v248'); a('v_lshl_add_u32 v248, v240, 4, v248'); a('v_and_b32 v249, 1, v241'); a('v_lshl_add_u32 v248, v249, 3, v248')
        a('s_mul_i32 s17, s52, 5120'); a('v_add_u32 v251, s17, v1'); a('v_add_u32 v252, 0x10000, v251')
        a('v_add_u32 v254, 0x10000, v1'); a('v_add_u32 v255, 0x20000, v1')
        a('v_lshlrev_b32 v249, 4, v240'); a('v_lshl_add_u32 v249, v241, 2, v249')
        a('s_cmp_ge_u32 s8, 5'); a('s_cbranch_scc1 L2_nomod2')
        a(f's_waitcnt vmcnt({4 * PF0})')
        sum4_round(a, vG, add='v9')
        a(f'v_add_u32 v8, {GS}, v8'); a(f'ds_write_b128 v8, v[{vG}:{vG+3}]')
        a.label('L2_nomod2')
    def emit(u, ar, g):
        ops = []
        for m, r in enumerate(ar):
            for h in range(2):
                def f(r=r, h=h, m=m):
                    t = vT + 8 * ((2 * m + h) & 1)
                    for j in range(4):
                        sel = ' op_sel:[1,0,0]' if j & 1 else ''
                        a(f'v_fma_mix_f32 v{t+j}, v{r+2*h+(j>>1)}, v{g+8+4*h+j}, v{g+4*h+j}{sel} op_sel_hi:[1,0,0]')
                    for j in range(2): a(f'v_cvt_pk_bf16_f32 v{r+2*h+j}, v{t+2*j}, v{t+2*j+1}')
                ops.append(f)
        return ops
    xf = dict(vG=vG, vaddr=4, off=lambda u, q: (q >> 1) * 2560 + u * 128 + (q & 1) * 16, emit=emit)
    gemm_main(a, 2, 8, 10, CK, PF, LD, RING2, vA, APOOL, vB, vacc, 1, [2, 3], [12, 13], 15, 9,
              NTD=16, orient=['T'] * 5 + ['N'] * 3, inject={'pro': pro}, PF0=PF0, xf=xf, stamps=(15, 16, 17))
    a.stamp(1)
    a('s_lshl_b32 s17, s8, 13'); a('v_add_u32 v5, s17, v1'); a('s_xor_b32 s17, s17, 0x2000'); a('v_add_u32 v6, s17, v1')
    a('s_barrier')
    for t in range(8): a(f'ds_write_b128 v5, v[{vacc+32+4*t}:{vacc+35+4*t}] offset:{1024*t}')
    a('s_lshl_b32 s17, s8, 2'); a('v_add_u32 v7, s17, v241'); a('v_xor_b32 v7, v7, v240'); a('v_and_b32 v7, 15, v7'); a('v_lshlrev_b32 v7, 4, v7')
    a('s_cmp_ge_u32 s2, 160'); a('s_cbranch_scc1 LS_ldw')
    a('v_mul_u32_u24 v8, 3456, v241'); a('v_add_u32 v7, v7, v8')
    a('s_mul_i32 s17, s55, 110592'); a('s_mul_i32 s18, s54, 448'); a('s_add_u32 s17, s17, s18'); a('s_mul_i32 s18, s8, 13824'); a('s_add_u32 s17, s17, s18')
    for mtx in range(2):
        for cbk in range(2):
            a(f's_add_u32 m0, s9, {SR + mtx*16384 + cbk*8192 - cbk*256}')
            a(f'buffer_load_dwordx4 v7, s[{40+4*mtx}:{43+4*mtx}], s17 offen offset:{256*cbk} lds')
    a('s_cmp_lg_u32 s8, 7'); a('s_cbranch_scc1 LS_ldd0')
    a('v_and_b32 v124, 7, v0'); a('v_bfe_u32 v125, v0, 3, 1'); a('v_mul_u32_u24 v126, 160, v125'); a('v_add_u32 v124, v124, v126')
    a('s_lshl_b32 s17, s55, 3'); a('s_add_u32 s17, s17, 480'); a('v_add_u32 v124, s17, v124'); a('v_lshlrev_b32 v124, 4, v124'); a('v_cvt_f32_u32 v125, v125')
    for p in range(4):
        a(f's_mov_b32 s17, {MODP + 15360*p}')
        a(f'buffer_load_dwordx4 v[{108+4*p}:{111+4*p}], v124, s[4:7], s17 offen')
    a('s_branch LS_ldd0')
    a.label('LS_ldw')
    a('v_mul_u32_u24 v8, 1280, v241'); a('v_add_u32 v7, v7, v8')
    a('s_mul_i32 s17, s55, 40960'); a('s_mul_i32 s18, s54, 640'); a('s_add_u32 s17, s17, s18'); a('s_mul_i32 s18, s8, 5120'); a('s_add_u32 s17, s17, s18')
    for cbk in range(3):
        a(f's_add_u32 m0, s9, {SR + cbk*8192 - cbk*256}')
        a(f'buffer_load_dwordx4 v7, s[48:51], s17 offen offset:{256*cbk} lds')
    a.label('LS_ldd0')
    a('v_lshrrev_b32 v8, 5, v0')
    a('s_lshl_b32 s17, s8, 4'); a('v_add_u32 v10, s17, v240'); a(f'v_mul_u32_u24 v10, {PITCH}, v10')
    a('v_mul_u32_u24 v11, 80, v8'); a('v_add_u32 v10, v10, v11'); a(f'v_add_u32 v10, {PKB}, v10')
    a('v_mul_u32_u24 v9, 1280, v8'); a('v_lshl_add_u32 v9, v240, 4, v9'); a('s_mul_i32 s17, s8, 2560'); a(f's_add_u32 s17, s17, {PQB}'); a('v_add_u32 v9, s17, v9')
    a('s_mul_i32 s17, s29, 3072'); a('s_lshl_b32 s18, s28, 3')
    a('s_add_u32 s17, s17, s18'); a(f's_add_u32 s17, s17, {VB_}'); a('v_add_u32 v11, s17, v1')
    a('v_and_b32 v12, 7, v0'); a('v_cmp_eq_u32 s[20:21], 4, v12'); a('v_mov_b32 v13, 0x3f803f80')
    a.stamp(18)
    a('s_waitcnt lgkmcnt(0)'); a('s_barrier')
    a.stamp(19)
    X = 16
    for t in range(8): a(f'ds_read_b128 v[{X+4*t}:{X+4*t+3}], v6 offset:{1024*t}')
    P = vacc
    for t in range(8):
        a(f's_waitcnt lgkmcnt({7-t})')
        for h in range(2): a(f'v_pk_add_f32 v[{P+4*t+2*h}:{P+4*t+2*h+1}], v[{P+4*t+2*h}:{P+4*t+2*h+1}], v[{X+4*t+2*h}:{X+4*t+2*h+1}]')
    a(f'v_max3_f32 v14, v{P}, v{P+1}, v{P+2}'); a(f'v_min3_f32 v15, v{P}, v{P+1}, v{P+2}')
    a(f'v_max3_f32 v16, v{P+3}, v{P+4}, v{P+5}'); a(f'v_min3_f32 v17, v{P+3}, v{P+4}, v{P+5}')
    for f in range(6, 18, 4):
        a(f'v_max3_f32 v14, v14, v{P+f}, v{P+f+1}'); a(f'v_min3_f32 v15, v15, v{P+f}, v{P+f+1}')
        a(f'v_max3_f32 v16, v16, v{P+f+2}, v{P+f+3}'); a(f'v_min3_f32 v17, v17, v{P+f+2}, v{P+f+3}')
    a(f'v_max3_f32 v14, v14, v{P+18}, v{P+19}'); a(f'v_min3_f32 v15, v15, v{P+18}, v{P+19}')
    for t in range(3):
        for jj in range(2): a(f'v_cvt_pk_bf16_f32 v{100+2*t+jj}, v{P+20+4*t+2*jj}, v{P+21+4*t+2*jj}')
    a('v_max_f32 v14, v14, v16'); a('v_min_f32 v15, v15, v17')
    a('v_cndmask_b32 v102, v102, v13, s[20:21]'); a('v_cndmask_b32 v103, v103, v13, s[20:21]')
    a('v_mul_f32 v14, s14, v14'); a('v_mul_f32 v15, s14, v15')
    for t in range(3): a(f'ds_write_b64 v11, v[{100+2*t}:{101+2*t}] offset:{1024*t}')
    E = 18
    a('s_mov_b32 s22, s14'); a('s_mov_b32 s23, s14')
    for f in range(0, 20, 2):
        a(f'v_pk_fma_f32 v[{E+f}:{E+f+1}], v[{P+f}:{P+f+1}], s[22:23], v[14:15] op_sel_hi:[1,1,0] neg_lo:[0,0,1] neg_hi:[0,0,1]')
        a(f'v_pk_fma_f32 v[{E+20+f}:{E+21+f}], v[{P+f}:{P+f+1}], s[22:23], v[14:15] op_sel:[0,0,1] op_sel_hi:[1,1,1] neg_lo:[1,0,0] neg_hi:[1,0,0]')
    for f in range(40): a(f'v_exp_f32 v{E+f}, v{E+f}')
    a(f'v_pk_add_f32 v[58:59], v[{E}:{E+1}], v[{E+2}:{E+3}]'); a(f'v_pk_add_f32 v[60:61], v[{E+20}:{E+21}], v[{E+22}:{E+23}]')
    a(f'v_pk_add_f32 v[62:63], v[{E+4}:{E+5}], v[{E+6}:{E+7}]'); a(f'v_pk_add_f32 v[64:65], v[{E+24}:{E+25}], v[{E+26}:{E+27}]')
    for f in range(8, 20, 4):
        a(f'v_pk_add_f32 v[58:59], v[58:59], v[{E+f}:{E+f+1}]'); a(f'v_pk_add_f32 v[60:61], v[60:61], v[{E+20+f}:{E+21+f}]')
        a(f'v_pk_add_f32 v[62:63], v[62:63], v[{E+f+2}:{E+f+3}]'); a(f'v_pk_add_f32 v[64:65], v[64:65], v[{E+22+f}:{E+23+f}]')
    a('v_pk_add_f32 v[58:59], v[58:59], v[62:63]'); a('v_pk_add_f32 v[60:61], v[60:61], v[64:65]')
    a('v_add_f32 v58, v58, v59'); a('v_add_f32 v60, v60, v61')
    a('v_rcp_f32 v58, v58'); a('v_rcp_f32 v60, v60')
    O = 68
    for f in range(0, 40, 2):
        rr = 58 if f < 20 else 60
        a(f'v_pk_mul_f32 v[{E+f}:{E+f+1}], v[{E+f}:{E+f+1}], v[{rr}:{rr+1}] op_sel_hi:[1,0]')
    for jj in range(20): a(f'v_cvt_pk_bf16_f32 v{O+jj}, v{E+2*jj}, v{E+2*jj+1}')
    a('s_mov_b32 exec_lo, 0xffff0000'); a('s_mov_b32 exec_hi, 0xffff0000')
    for o in range(5): a(f'ds_write_b128 v10, v[{O+4*o}:{O+4*o+3}] offset:{16*o}')
    a('s_mov_b32 exec_lo, 0xffff'); a('s_mov_b32 exec_hi, 0xffff')
    for o in range(5): a(f'ds_write_b128 v9, v[{O+4*o}:{O+4*o+3}] offset:{256*o}')
    a('s_mov_b64 exec, -1')
    a('v_lshrrev_b32 v8, 2, v0'); a(f'v_mul_u32_u24 v8, {PITCH}, v8'); a('v_and_b32 v9, 3, v0'); a('v_lshl_add_u32 v8, v9, 3, v8')
    a('s_mul_i32 s18, s60, 80'); a('s_lshl_b32 s19, s61, 5'); a('s_add_u32 s18, s18, s19'); a(f's_add_u32 s18, s18, {PKB}')
    a('v_add_u32 v8, s18, v8')
    a('s_lshl_b32 s18, s60, 11'); a(f's_add_u32 s18, s18, {VB_}'); a('v_add_u32 v9, s18, v1')
    a(f'v_add_u32 v10, {VB_ + 1024}, v1')
    a('s_lshl_b32 s18, s11, 5'); a('s_lshl_b32 s19, s10, 1'); a('s_add_u32 s18, s18, s19'); a('s_add_u32 s18, s18, s60')
    a('s_mul_i32 s18, s18, 3360'); a('s_lshl_b32 s19, s61, 6'); a('s_add_u32 s18, s18, s19'); a(f's_add_u32 s18, s18, {KVP}')
    a('v_mul_u32_u24 v12, 160, v240'); a('v_lshl_add_u32 v12, v241, 4, v12')
    a(f'v_mov_b32 v14, {OOB}')
    a('s_lshl_b32 s19, s61, 2'); a('v_add_u32 v11, s19, v241'); a('v_cmp_gt_u32 vcc, 10, v11'); a('v_cndmask_b32 v12, v14, v12, vcc')
    a('s_lshl_b32 s19, s60, 3'); a('v_subrev_u32 v11, s19, v240')
    a('s_mul_i32 s19, s60, 1280'); a('s_sub_u32 s19, 2560, s19'); a('v_add_u32 v13, s19, v12')
    a('v_cmp_gt_u32 vcc, 5, v11'); a('v_cndmask_b32 v13, v14, v13, vcc')
    a('s_waitcnt lgkmcnt(0)'); a('s_barrier')
    a.stamp(2)
    a('s_cmp_ge_u32 s8, 6'); a('s_cbranch_scc1 L2_nokv')
    for ks in range(4):
        r = 16 + 12 * ks
        a(f'ds_read_b64_tr_b16 v[{r}:{r+1}], v8 offset:{ks*32*PITCH}')
        a(f'ds_read_b64_tr_b16 v[{r+2}:{r+3}], v8 offset:{(ks*32+16)*PITCH}')
        a(f'ds_read_b128 v[{r+4}:{r+7}], v9 offset:{ks*3072}')
        a(f'ds_read_b128 v[{r+8}:{r+11}], v10 offset:{ks*3072}')
    for ks in range(4):
        r = 16 + 12 * ks
        a(f's_waitcnt lgkmcnt({4*(3-ks)})')
        c0 = 'v[92:95]' if ks else '0'; c1 = 'v[96:99]' if ks else '0'
        a(f'v_mfma_f32_16x16x32_bf16 v[92:95], v[{r}:{r+3}], v[{r+4}:{r+7}], {c0}')
        a(f'v_mfma_f32_16x16x32_bf16 v[96:99], v[{r}:{r+3}], v[{r+8}:{r+11}], {c1}')
    a('buffer_store_dwordx4 v[92:95], v12, s[4:7], s18 offen sc1')
    a('buffer_store_dwordx4 v[96:99], v13, s[4:7], s18 offen sc1')
    a.label('L2_nokv')
    def lds_a_addr(dst, sP, cb, aa, clamp):
        if clamp: a(f'v_and_b32 v{dst}, 1, v241'); a(f'v_add_u32 v{dst}, {sP}, v{dst}')
        else: a(f'v_add_u32 v{dst}, {sP}, v241')
        if cb: a(f'v_add_u32 v{dst}, {4*cb}, v{dst}')
        a(f'v_add_u32 v170, {4*aa}, v244'); a(f'v_xor_b32 v171, v170, v{dst}'); a('v_and_b32 v171, 15, v171')
        a(f'v_lshrrev_b32 v{dst}, 4, v{dst}'); a(f'v_lshlrev_b32 v{dst}, 13, v{dst}')
        a(f'v_lshl_add_u32 v{dst}, v170, 8, v{dst}'); a(f'v_lshl_add_u32 v{dst}, v171, 4, v{dst}'); a(f'v_add_u32 v{dst}, {SR}, v{dst}')
    SEL = 128
    a('s_cmp_ge_u32 s2, 160'); a('s_cbranch_scc1 LS_sel5')
    a('s_cmp_lg_u32 s8, 7'); a('s_cbranch_scc1 LS_not7')
    a('s_waitcnt vmcnt(0)')
    sum4_round(a, 108, add='v125')
    a(f'v_add_u32 v124, {TAB + 640}, v1'); a('s_mov_b32 exec_lo, 0xffff'); a('s_mov_b32 exec_hi, 0'); a('ds_write_b128 v124, v[108:111]'); a('s_mov_b64 exec, -1')
    a.label('LS_not7')
    a('v_and_b32 v160, 1, v240'); a('v_lshl_add_u32 v161, v242, 3, v160'); a('v_lshl_add_u32 v160, v242, 1, v160')
    a('s_cmp_eq_u32 s28, 0'); a('s_cselect_b64 vcc, -1, 0'); a('v_cndmask_b32 v160, v160, v161, vcc')
    a('v_mov_b32 v161, 100'); a('v_and_b32 v162, 2, v240'); a('v_cmp_eq_u32 vcc, 0, v162'); a('v_cndmask_b32 v162, v161, v160, vcc'); a('v_cndmask_b32 v160, v160, v161, vcc')
    a('s_mul_i32 s17, s29, 7'); a('s_lshl_b32 s19, s28, 2'); a('s_add_u32 s17, s17, s19')
    for aa in range(2): lds_a_addr(164 + aa, 's17', 0, aa, False)
    a('s_cmp_eq_u32 s28, 0'); a('s_cbranch_scc0 LS_selB')
    sel_frags(a, SEL, 162, 241, 166, 4, 2); sel_frags(a, SEL + 16, 160, 241, 166, 4, 2)
    a('s_branch LS_seld')
    a.label('LS_selB')
    sel_frags(a, SEL, 162, 241, 166, 3, 8); sel_frags(a, SEL + 16, 160, 241, 166, 3, 8)
    a('s_branch LS_seld')
    a.label('LS_sel5')
    a('s_cmp_ge_u32 s8, 4'); a('s_cbranch_scc1 LS_seld')
    sel_frags(a, SEL, 244, 241, 166, 2, 4); sel_frags(a, SEL + 8, 240, 241, 166, 1, 0)
    a('s_mul_i32 s17, s8, 10')
    for cb in range(3):
        for aa in range(2): lds_a_addr(160 + 2 * cb + aa, 's17', cb, aa, cb == 2)
    a.label('LS_seld')
    a('v_lshrrev_b32 v5, 1, v250')
    a('v_mul_u32_u24 v6, 1249, v5'); a('v_lshrrev_b32 v6, 17, v6')
    a('v_mul_u32_u24 v7, 105, v6'); a('v_sub_u32 v7, v5, v7')
    a('v_mul_u32_u24 v22, 205, v7'); a('v_lshrrev_b32 v22, 10, v22')
    a('v_mul_u32_u24 v23, 5, v22'); a('v_sub_u32 v23, v7, v23')
    a('v_mul_u32_u24 v16, 5, v6'); a('v_add_u32 v16, v16, v23')
    a('v_lshlrev_b32 v18, 8, v16')
    a('v_and_b32 v17, 1, v250'); a('v_lshl_add_u32 v18, v17, 3, v18'); a(f'v_add_u32 v18, {KF}, v18')
    a('v_mul_u32_u24 v24, 20, v6'); a('v_add_u32 v24, v24, v22')
    a('v_bfe_u32 v15, v24, 2, 1'); a('v_mul_u32_u24 v15, 3072, v15')
    a('v_lshrrev_b32 v17, 3, v24'); a('v_lshl_add_u32 v15, v17, 6, v15'); a('v_and_b32 v17, 3, v24'); a('v_lshl_add_u32 v15, v17, 4, v15')
    a('v_subrev_u32 v17, 32, v24'); a('v_lshrrev_b32 v19, 1, v17'); a('v_lshlrev_b32 v19, 6, v19'); a('v_and_b32 v17, 1, v17'); a('v_lshl_add_u32 v19, v17, 4, v19')
    a('v_add_u32 v19, 6176, v19')
    a('v_cmp_lt_u32 vcc, 31, v24'); a('v_cndmask_b32 v15, v15, v19, vcc')
    a('v_lshlrev_b32 v19, 4, v6'); a('v_add_u32 v19, 6144, v19'); a('v_cmp_eq_u32 s[20:21], 20, v22'); a('v_cndmask_b32 v15, v15, v19, s[20:21]')
    a('v_add_u32 v18, v18, v15')
    a('v_lshlrev_b32 v5, 4, v250'); a(f'v_mov_b32 v6, {OOB}'); a('v_mov_b32 v7, 420'); a('v_cmp_lt_u32 s[22:23], v250, v7'); a('v_cndmask_b32 v5, v6, v5, s[22:23]')
    a('s_lshl_b32 s19, s10, 7'); a(f's_add_u32 s19, s19, {F2}'); a('s_lshl_b32 s18, s11, 2'); a('s_add_u32 s18, s18, s19')
    a('s_mul_i32 s16, s10, 6720'); a(f's_add_u32 s16, s16, {KVP}')
    a('s_mul_i32 s15, s25, 102400'); a('s_add_u32 s15, s15, s9'); a(f's_add_u32 s15, s15, {WO}')
    for j in range(4): a(f'v_mov_b32 v{28+j}, 0')
    a('v_lshlrev_b32 v8, 4, v250'); a(f'v_add_u32 v8, {KF}, v8'); a(f'v_add_u32 v9, {KF + 8192}, v1')
    a('s_waitcnt vmcnt(0) lgkmcnt(0)'); a('s_barrier')
    set_flags(a, ['s18'], wave=7)
    a.stamp(3)
    a('ds_write_b128 v8, v[28:31]'); a('ds_write_b128 v9, v[28:31]')
    a('s_cmp_ge_u32 s2, 160'); a('s_cbranch_scc1 LS_do5')
    a('s_lshl_b32 s63, s54, 2'); a('s_add_u32 s63, s63, s29')
    a('s_cmp_ge_u32 s63, 31'); a('s_cbranch_scc1 LS_done')
    a('v_lshlrev_b32 v170, 5, v241'); a(f'v_add_u32 v170, {TAB + 640}, v170')
    for aa in range(2):
        for mtx in range(2): a(f'ds_read_b128 v[{172+8*mtx+4*aa}:{175+8*mtx+4*aa}], v{164+aa} offset:{16384*mtx}')
    a('ds_read_b128 v[188:191], v170'); a('ds_read_b128 v[192:195], v170 offset:16'); a('ds_read_b128 v[196:199], v170 offset:128'); a('ds_read_b128 v[200:203], v170 offset:144')
    for j in range(4): a(f'v_mov_b32 v{48+j}, 0x3f803f80')
    for j in range(8): a(f'v_mov_b32 v{96+j}, 0')
    a('s_mul_i32 s17, s63, 143360'); a('s_mul_i32 s64, s55, 7168'); a('s_add_u32 s17, s17, s64'); a('s_lshl_b32 s64, s28, 12'); a('s_add_u32 s17, s17, s64'); a(f's_add_u32 s17, s17, {WGU}')
    a('s_waitcnt lgkmcnt(0)')
    for jj in range(4): a(f'v_cvt_pk_bf16_f32 v{52+jj}, v{188+2*jj}, v{189+2*jj}')
    for tq in range(4):
        if tq == 3: a('s_cmp_eq_u32 s28, 1'); a('s_cbranch_scc1 LS_wgu3')
        d = 204 + 8 * (tq & 1)
        for aa in range(2):
            rg = 172 + 4 * aa; ru = rg + 8
            a(f'v_mfma_f32_16x16x32_bf16 v[{d+4*aa}:{d+4*aa+3}], v[{rg}:{rg+3}], v[{SEL+4*tq}:{SEL+3+4*tq}], 0')
            a(f'v_mfma_f32_16x16x32_bf16 v[{d+4*aa}:{d+4*aa+3}], v[{ru}:{ru+3}], v[{SEL+16+4*tq}:{SEL+19+4*tq}], v[{d+4*aa}:{d+4*aa+3}]')
        un = 56 + 4 * (tq & 1); o = 64 + 4 * (tq & 1)
        for jj in range(4): a(f'v_cvt_pk_bf16_f32 v{un+jj}, v{d+2*jj}, v{d+2*jj+1}')
        for j in range(0, 8, 2): a(f'v_pk_mul_f32 v[{d+j}:{d+j+1}], v[{d+j}:{d+j+1}], v[{196+j}:{197+j}]')
        for jj in range(4): a(f'v_cvt_pk_bf16_f32 v{o+jj}, v{d+2*jj}, v{d+2*jj+1}')
        a(f'buffer_store_dwordx4 v[{o}:{o+3}], v1, s[4:7], s17 offen offset:{1024*tq} sc1')
        cs = 72 + 8 * tq; bs = cs + 4
        a(f'v_mfma_f32_16x16x32_bf16 v[{cs}:{cs+3}], v[48:51], v[{o}:{o+3}], 0')
        a(f'v_mfma_f32_16x16x32_bf16 v[{bs}:{bs+3}], v[52:55], v[{un}:{un+3}], 0')
    a.label('LS_wgu3')
    for r0, dst in ((72, 44), (76, 45)):
        a(f'v_mov_b32 v{dst}, v{r0}')
        for g in range(1, 4):
            a(f'v_cmp_eq_u32 vcc, {g}, v241'); a(f'v_cndmask_b32 v{dst}, v{dst}, v{r0+8*g}, vcc')
    a('s_mul_i32 s17, s63, 20'); a('s_add_u32 s17, s17, s55'); a('s_lshl_b32 s17, s17, 10'); a('s_lshl_b32 s64, s28, 8'); a('s_add_u32 s17, s17, s64'); a(f's_add_u32 s17, s17, {CSP}')
    a('v_lshlrev_b32 v46, 2, v0')
    a('buffer_store_dword v44, v46, s[4:7], s17 offen sc1'); a('buffer_store_dword v45, v46, s[4:7], s17 offen offset:512 sc1')
    a('s_branch LS_done')
    a.label('LS_do5')
    a('s_cmp_ge_u32 s8, 4'); a('s_cbranch_scc1 LS_done')
    for cb in range(3):
        for aa in range(2): a(f'ds_read_b128 v[{172+12*aa+4*cb}:{175+12*aa+4*cb}], v{160+2*cb+aa}')
    a('s_cmp_ge_u32 s55, 27'); a('s_cselect_b32 s64, 1, 0'); a('s_mul_i32 s17, s64, 27'); a('s_sub_u32 s17, s55, s17')
    a('s_lshl_b32 s17, s17, 1'); a('s_add_u32 s17, s17, s64'); a('s_mul_i32 s17, s17, 5120')
    a('s_lshl_b32 s64, s54, 2'); a('s_add_u32 s64, s64, s8'); a('s_mul_i32 s64, s64, 276480'); a('s_add_u32 s17, s17, s64'); a(f's_add_u32 s17, s17, {WD}')
    a('s_waitcnt lgkmcnt(0)')
    for t in range(5):
        d = 204 + 8 * (t & 1); cb = t >> 1; sel = SEL + 4 * (t & 1) if t < 4 else SEL + 8
        for aa in range(2):
            r = 172 + 12 * aa + 4 * cb
            a(f'v_mfma_f32_16x16x32_bf16 v[{d+4*aa}:{d+4*aa+3}], v[{r}:{r+3}], v[{sel}:{sel+3}], 0')
        o = 64 + 4 * (t & 1)
        for jj in range(4): a(f'v_cvt_pk_bf16_f32 v{o+jj}, v{d+2*jj}, v{d+2*jj+1}')
        if t == 4: a('s_add_u32 s17, s17, 4096')
        a(f'buffer_store_dwordx4 v[{o}:{o+3}], v1, s[4:7], s17 offen offset:{1024*(t & 3)} sc1')
    a.label('LS_done')
    a.stamp(4)
    poll(a, [('s19', 16)], pre='s_waitcnt lgkmcnt(0)')
    a.stamp(5)
    for p in range(16):
        a(f'buffer_load_dwordx4 v[{64+4*p}:{67+4*p}], v5, s[4:7], s16 offen sc1')
        if p < 15: a(f's_add_u32 s16, s16, {32*3360}')
    a('s_mul_i32 s17, s8, 2560'); a(f's_add_u32 s17, s17, {PQB}'); a('v_add_u32 v8, s17, v1')
    for j in range(4): a(f'v_mov_b32 v{40+j}, 0')
    a('ds_read_b128 v[32:35], v8'); a('ds_read_b128 v[36:39], v8 offset:1024')
    a('s_mov_b32 exec_hi, 0'); a('ds_read_b128 v[40:43], v8 offset:2048'); a('s_mov_b32 exec_hi, -1')
    a('s_lshl_b32 s17, s11, 3'); a('s_add_u32 s17, s17, s8'); a('s_mul_i32 s17, s17, 20480'); a('s_mul_i32 s18, s10, 1280'); a('s_add_u32 s17, s17, s18'); a(f's_add_u32 s17, s17, {O_}')
    a('v_cmp_gt_u32 s[64:65], 3, v241'); a('v_cmp_gt_u32 s[66:67], 2, v241')
    a(f's_mov_b32 s63, {f2u(1e-6)}')
    a(f'v_add_u32 v10, {KF}, v1')
    for p in range(2, 16):
        a(f's_waitcnt vmcnt({15-p})')
        d = 64 + 4 * (p & 1)
        for j in range(0, 4, 2): a(f'v_pk_add_f32 v[{d+j}:{d+j+1}], v[{d+j}:{d+j+1}], v[{64+4*p+j}:{64+4*p+j+1}]')
    for j in range(0, 4, 2): a(f'v_pk_add_f32 v[{64+j}:{65+j}], v[{64+j}:{65+j}], v[{68+j}:{69+j}]')
    for jj in range(2): a(f'v_cvt_pk_bf16_f32 v{12+jj}, v{64+2*jj}, v{65+2*jj}')
    a('s_mov_b64 exec, s[22:23]'); a('ds_write_b64 v18, v[12:13]')
    a('s_and_b64 exec, exec, s[20:21]')
    for k in range(1, 4): a(f'ds_write_b64 v18, v[12:13] offset:{64*k}')
    a('s_mov_b64 exec, -1')
    a('s_waitcnt lgkmcnt(0)'); a('s_barrier')
    a.stamp(20)
    for f in range(9): a(f'ds_read_b128 v[{64+4*f}:{67+4*f}], v10 offset:{1024*f}')
    for ks in range(3):
        for tl in (2, 0, 1):
            f = tl * 3 + ks
            if ks == 0 and tl == 2: a('s_waitcnt lgkmcnt(0)')
            d = 100 + 4 * tl
            a(f'v_mfma_f32_16x16x32_bf16 v[{d}:{d+3}], v[{64+4*f}:{67+4*f}], v[{32+4*ks}:{35+4*ks}], {"0" if ks == 0 else f"v[{d}:{d+3}]"}')
    a('v_add_f32 v108, s63, v108'); a('v_add_f32 v109, s63, v109'); a('v_rcp_f32 v108, v108'); a('v_rcp_f32 v109, v109')
    a('v_cndmask_b32 v12, v109, v108, s[64:65]'); a('v_cndmask_b32 v13, v109, v108, s[66:67]')
    for j in range(4): a(f'v_mul_f32 v{100+j}, v{100+j}, v12')
    for j in range(4): a(f'v_mul_f32 v{104+j}, v{104+j}, v13')
    a('v_mul_f32 v110, v110, v109'); a('v_mul_f32 v111, v111, v109')
    for jj in range(4): a(f'v_cvt_pk_bf16_f32 v{48+jj}, v{100+2*jj}, v{101+2*jj}')
    a('v_cvt_pk_bf16_f32 v52, v110, v111')
    a('buffer_store_dwordx4 v[48:51], v1, s[4:7], s17 offen sc1'); a('buffer_store_dword v52, v249, s[4:7], s17 offen offset:1024 sc1')
    a('s_mul_i32 s65, s25, 20'); a('s_add_u32 s65, s65, 320')
    a('v_add_u32 v20, s65, v0'); a('v_add_u32 v21, 460, v20'); a('v_cmp_lt_u32 vcc, 19, v0'); a('v_cndmask_b32 v20, v20, v21, vcc'); a('v_lshlrev_b32 v20, 4, v20')
    a(f'v_add_u32 v23, {TAB}, v1')
    a(f's_cmp_lt_u32 s2, 160'); a(f's_cselect_b32 s64, 0, {FD - FG}'); a('s_lshl_b32 s65, s54, 8'); a('s_add_u32 s64, s64, s65'); a('s_lshl_b32 s65, s55, 2'); a('s_add_u32 s64, s64, s65'); a(f's_add_u32 s64, s64, {FG}')
    a('s_lshl_b32 s17, s11, 7'); a('s_lshl_b32 s18, s10, 2'); a('s_add_u32 s17, s17, s18'); a(f's_add_u32 s17, s17, {F3}')
    a('s_lshr_b32 s19, s24, 1'); a('s_lshl_b32 s19, s19, 7'); a(f's_add_u32 s19, s19, {F3}')
    a('s_mul_i32 s12, s52, 10240'); a('s_add_u32 s12, s12, s31'); a(f's_add_u32 s12, s12, {O_}')
    a('s_waitcnt vmcnt(0)'); a('s_barrier')
    set_flags(a, ['s17', 's64'], wave=7)
    a.stamp(6)
    a('s_cmp_lg_u32 s8, 6'); a('s_cbranch_scc1 LS_notab')
    for p in range(4):
        a(f's_mov_b32 s17, {MODP + 15360*p}')
        a(f'buffer_load_dwordx4 v[{28+4*p}:{31+4*p}], v20, s[4:7], s17 offen')
    a.label('LS_notab')
    dma7(a, 15, 100)
    a('s_cmp_lg_u32 s8, 6'); a('s_cbranch_scc1 LS_notab2')
    a('s_waitcnt vmcnt(14)')
    sum4_round(a, 28)
    a('s_mov_b32 exec_hi, 0xff'); a('ds_write_b128 v23, v[28:31]'); a('s_mov_b64 exec, -1')
    a.label('LS_notab2')
    XR = 8
    a('s_cmp_eq_u32 s52, 1'); a('s_cbranch_scc1 LS_nox')
    a(f'buffer_load_dwordx4 v[{XR}:{XR+3}], v246, s[32:35], s59 offen'); a(f'buffer_load_dwordx4 v[{XR+4}:{XR+7}], v246, s[32:35], s59 offen offset:64')
    a(f'buffer_load_dwordx2 v[{XR+8}:{XR+9}], v247, s[32:35], s59 offen offset:128')
    a.label('LS_nox')
    a.stamp(21)
    poll(a, [('s19', 16)])
    a.stamp(7)
    vA3, vB3, vacc3 = 48, 88, 148
    gemm_main(a, 1, 5, 10, 1, 10, 2, 104, vA3, 10, vB3, vacc3, 1, [251, 252], [12], 15, 9, NTD=10, pre_rounds=13, asc='sc1')
    a.stamp(8)
    def epi35(is3, vacc, xreg):
        L1 = newlbl('Lwk1')
        a('s_mul_i32 s17, s53, 5120'); a(f's_add_u32 s17, s17, {xreg}'); a('v_add_u32 v5, s17, v1')
        a('v_lshlrev_b32 v6, 5, v241'); a(f'v_add_u32 v6, {TAB + (0 if is3 else 320)}, v6'); a('v_lshlrev_b32 v7, 4, v241'); a(f'v_add_u32 v7, {TAB + (0 if is3 else 320) + 256}, v7')
        a('s_cmp_eq_u32 s52, 0'); a(f's_cbranch_scc1 {L1}')
        for t in range(5): a(f'ds_write_b128 v5, v[{vacc+4*t}:{vacc+4*t+3}] offset:{1024*t}')
        a.label(L1)
        G = 20
        for t in range(4): a(f'ds_read_b128 v[{G+4*t}:{G+4*t+3}], v6 offset:{(t >> 1)*128 + (t & 1)*16}')
        a(f'ds_read_b128 v[{G+16}:{G+19}], v7')
        a('s_waitcnt lgkmcnt(0)'); a('s_barrier')
        return G
    G = epi35(True, vacc3, X3)
    a('s_mul_i32 s15, s27, 143360'); a('s_add_u32 s15, s15, s9'); a(f's_add_u32 s15, s15, {WGU}')
    a('s_lshr_b32 s18, s25, 2'); a('s_lshl_b32 s18, s18, 8'); a(f's_add_u32 s18, s18, {FD}'); a('s_lshr_b32 s19, s27, 2'); a('s_lshl_b32 s19, s19, 8'); a(f's_add_u32 s19, s19, {FG}')
    a('s_cmp_eq_u32 s52, 1'); a('s_cbranch_scc1 L3_wk1')
    def resid_epi(vacc, G):
        T = 48; Xc = 68
        for t in range(5): a(f'ds_read_b128 v[{Xc+4*t}:{Xc+4*t+3}], v5 offset:{1024*t}')
        for j in range(10): unpack(a, T + 2 * j, T + 2 * j + 1, XR + j)
        for t in range(5):
            a(f's_waitcnt lgkmcnt({4-t})')
            for h in range(2): a(f'v_pk_add_f32 v[{vacc+4*t+2*h}:{vacc+4*t+2*h+1}], v[{vacc+4*t+2*h}:{vacc+4*t+2*h+1}], v[{Xc+4*t+2*h}:{Xc+4*t+2*h+1}]')
        for j in range(10): a(f'v_pk_fma_f32 v[{T+2*j}:{T+2*j+1}], v[{vacc+2*j}:{vacc+2*j+1}], v[{G+2*j}:{G+2*j+1}], v[{T+2*j}:{T+2*j+1}]')
        for j in range(10): a(f'v_cvt_pk_bf16_f32 v{XR+j}, v{T+2*j}, v{T+2*j+1}')
        return T
    T = resid_epi(vacc3, G)
    a('s_mul_i32 s17, s25, 2560'); a('s_add_u32 s17, s17, s31'); a(f's_add_u32 s17, s17, {X1}')
    a(f'buffer_store_dwordx4 v[{XR}:{XR+3}], v1, s[4:7], s17 offen sc1'); a(f'buffer_store_dwordx4 v[{XR+4}:{XR+7}], v1, s[4:7], s17 offen offset:1024 sc1')
    a(f'buffer_store_dwordx2 v[{XR+8}:{XR+9}], v248, s[4:7], s17 offen offset:2048 sc1')
    for j in range(10): unpack(a, T + 2 * j, T + 2 * j + 1, XR + j)
    S = 44
    a(f'v_pk_add_f32 v[{S}:{S+1}], v[{T}:{T+1}], v[{T+2}:{T+3}]'); a(f'v_pk_mul_f32 v[{S+2}:{S+3}], v[{T}:{T+1}], v[{T}:{T+1}]')
    a(f'v_pk_fma_f32 v[{S+2}:{S+3}], v[{T+2}:{T+3}], v[{T+2}:{T+3}], v[{S+2}:{S+3}]')
    for j in range(4, 20, 2):
        a(f'v_pk_add_f32 v[{S}:{S+1}], v[{S}:{S+1}], v[{T+j}:{T+j+1}]'); a(f'v_pk_fma_f32 v[{S+2}:{S+3}], v[{T+j}:{T+j+1}], v[{T+j}:{T+j+1}], v[{S+2}:{S+3}]')
    a(f'v_add_f32 v{S}, v{S}, v{S+1}'); a(f'v_add_f32 v{S+1}, v{S+2}, v{S+3}')
    for sw in ('16', '32'):
        a(f'v_mov_b32 v{S+2}, v{S}'); a(f'v_mov_b32 v{S+3}, v{S+1}')
        a(f'v_permlane{sw}_swap_b32 v{S}, v{S+2}'); a(f'v_permlane{sw}_swap_b32 v{S+1}, v{S+3}')
        a(f'v_pk_add_f32 v[{S}:{S+1}], v[{S}:{S+1}], v[{S+2}:{S+3}]')
    a('v_lshlrev_b32 v7, 3, v240')
    a('s_lshl_b32 s17, s30, 10'); a('s_lshl_b32 s16, s25, 7'); a('s_add_u32 s17, s17, s16'); a(f's_add_u32 s17, s17, {ST}')
    a('s_mov_b32 exec_lo, 0xffff'); a('s_mov_b32 exec_hi, 0')
    a(f'buffer_store_dwordx2 v[{S}:{S+1}], v7, s[4:7], s17 offen sc1')
    a('s_mov_b64 exec, -1')
    a('s_waitcnt vmcnt(0)')
    a.label('L3_wk1')
    a('s_lshr_b32 s17, s24, 2'); a('s_lshl_b32 s17, s17, 7'); a('s_and_b32 s16, s24, 3'); a('s_lshl_b32 s16, s16, 5'); a('s_add_u32 s17, s17, s16')
    a('s_lshl_b32 s16, s25, 2'); a('s_add_u32 s17, s17, s16'); a(f's_add_u32 s17, s17, {F4}')
    poll(a, [('s19', 20), ('s18', 48)])
    set_flags(a, ['s17'], wave=7)
    a.stamp(9)
    a('s_cmp_ge_u32 s27, 31'); a('s_cbranch_scc1 L4_skip')
    a('s_cmp_ge_u32 s8, 4'); a('s_cbranch_scc1 L4_nocs')
    a('v_lshlrev_b32 v5, 2, v250'); a('s_mul_i32 s17, s27, 20480'); a(f's_add_u32 s17, s17, {CSP}')
    for j in range(20):
        a(f'buffer_load_dword v{8+j}, v5, s[4:7], s17 offen offset:{1024*(j & 3)} sc1')
        if j & 3 == 3: a('s_add_u32 s17, s17, 4096')
    a.label('L4_nocs')
    dma7(a, 15, 140)
    a('s_cmp_ge_u32 s8, 4'); a('s_cbranch_scc1 L4_nocs2')
    a('s_waitcnt vmcnt(20)')
    for j in range(4): a(f'v_add_f32 v{8+j}, v{8+j}, v{24+j}')
    for st_ in (8, 4, 2, 1):
        for j in range(st_): a(f'v_add_f32 v{8+j}, v{8+j}, v{8+j+st_}')
    a(f'v_add_u32 v5, {CST}, v5'); a('ds_write_b32 v5, v8')
    a.label('L4_nocs2')
    a.stamp(22)
    PF, PF0, CK, LD = p4
    a('s_lshl_b32 s16, s26, 4'); a('s_lshl_b32 s12, s8, 1'); a('s_add_u32 s16, s16, s12')
    a('s_mul_i32 s12, s16, 20480'); a(f's_add_u32 s12, s12, {X1}'); a('s_add_u32 s13, s12, 20480')
    a('s_lshl_b32 s17, s26, 7'); a(f's_add_u32 s17, s17, {F4}')
    poll(a, [('s17', 32)])
    a.stamp(10)
    APOOL = PF + 2
    vST = 8
    vA = 16; vB = vA + APOOL * 8; vacc = vB + (LD + 1) * 28
    assert vacc + 56 <= 230, vacc
    def late(extra):
        a('v_lshlrev_b32 v6, 8, v241'); a('v_lshl_add_u32 v6, v240, 3, v6')
        a('s_lshl_b32 s17, s16, 10'); a(f's_add_u32 s17, s17, {ST}')
        for m in range(2):
            for h in range(2): a(f'buffer_load_dwordx2 v[{vST+4*m+2*h}:{vST+4*m+2*h+1}], v6, s[4:7], s17 offen offset:{1024*m + 128*h} sc1')
        extra(4)
        a('v_lshlrev_b32 v7, 4, v241'); a(f'v_add_u32 v7, {CST}, v7')
    def twd_f(k):
        def f(extra):
            a('s_mul_i32 s18, s25, 276480'); a(f's_add_u32 s18, s18, {WD}')
            touch(a, 's18', [f's_add_u32 s57, s8, {8*k}', 's_lshl_b32 s57, s57, 2', 's_and_b32 s56, s24, 3', 's_add_u32 s57, s57, s56'], 34); extra(1)
        return f
    inj = {8: late}
    if twd: inj.update({10: twd_f(0), 12: twd_f(1)})
    gemm_main(a, 2, 7, 20, CK, PF, LD, 144, vA, APOOL, vB, vacc, 1, [1, 254, 255], [12, 13], 15, 9, inject=inj, PF0=PF0, pre_rounds=18, asc='sc1')
    a.stamp(11)
    CS = vA
    for t in range(7):
        a(f'ds_read_b128 v[{CS+8*t}:{CS+8*t+3}], v7 offset:{64*t}'); a(f'ds_read_b128 v[{CS+8*t+4}:{CS+8*t+7}], v7 offset:{512+64*t}')
    C1 = -2.0 * 0.7978845608028654 * LOG2E
    a(f's_mov_b32 s20, {f2u(C1)}'); a(f's_mov_b32 s21, {f2u(C1)}'); a(f's_mov_b32 s22, {f2u(C1 * 0.044715)}'); a(f's_mov_b32 s23, {f2u(C1 * 0.044715)}')
    a('s_mul_i32 s17, s16, 57344'); a('s_mul_i32 s18, s27, 1792'); a('s_add_u32 s17, s17, s18'); a(f's_add_u32 s17, s17, {ACT}'); a('s_add_u32 s18, s17, 57344')
    for m in range(2):
        b = vST + 4 * m
        a(f'v_pk_add_f32 v[{b}:{b+1}], v[{b}:{b+1}], v[{b+2}:{b+3}]')
    for sw in ('16', '32'):
        for m in range(2):
            b = vST + 4 * m
            a(f'v_mov_b32 v{b+2}, v{b}'); a(f'v_mov_b32 v{b+3}, v{b+1}')
        for m in range(2):
            b = vST + 4 * m
            a(f'v_permlane{sw}_swap_b32 v{b}, v{b+2}'); a(f'v_permlane{sw}_swap_b32 v{b+1}, v{b+3}')
        for m in range(2):
            b = vST + 4 * m
            a(f'v_pk_add_f32 v[{b}:{b+1}], v[{b}:{b+1}], v[{b+2}:{b+3}]')
    def both(fmt):
        for m in range(2): a(fmt.format(b=vST + 4 * m, b1=vST + 4 * m + 1))
    both('v_mul_f32 v{b}, ' + f2u(1/640) + ', v{b}'); both('v_mul_f32 v{b1}, ' + f2u(1/640) + ', v{b1}')
    both('v_fma_f32 v{b1}, -v{b}, v{b}, v{b1}'); both('v_max_f32 v{b1}, 0, v{b1}'); both('v_add_f32 v{b1}, ' + f2u(1e-5) + ', v{b1}')
    both('v_rsq_f32 v{b1}, v{b1}'); both('v_mul_f32 v{b}, v{b}, v{b1}')
    a('s_waitcnt lgkmcnt(0)')
    Y = vB; Z = vB + 28; OUT = vB + 44
    assert OUT % 4 == 0
    for m in range(2):
        b = vST + 4 * m
        for t in range(7):
            for h in range(2):
                a(f'v_pk_fma_f32 v[{Y+4*t+2*h}:{Y+4*t+2*h+1}], v[{b}:{b+1}], v[{CS+8*t+2*h}:{CS+8*t+2*h+1}], v[{CS+8*t+4+2*h}:{CS+8*t+5+2*h}] op_sel_hi:[0,1,1] neg_lo:[1,0,0] neg_hi:[1,0,0]')
        for t in range(7):
            d = vacc + (m * 7 + t) * 4
            for h in range(2):
                a(f'v_pk_fma_f32 v[{Y+4*t+2*h}:{Y+4*t+2*h+1}], v[{b}:{b+1}], v[{d+2*h}:{d+2*h+1}], v[{Y+4*t+2*h}:{Y+4*t+2*h+1}] op_sel:[1,0,0] op_sel_hi:[1,1,1]')
        for t in range(7): a(f'v_pk_mul_f32 v[{Z+2*t}:{Z+2*t+1}], v[{Y+4*t}:{Y+4*t+1}], v[{Y+4*t}:{Y+4*t+1}]')
        for t in range(7): a(f'v_pk_mul_f32 v[{Z+2*t}:{Z+2*t+1}], v[{Z+2*t}:{Z+2*t+1}], s[22:23]')
        for t in range(7): a(f'v_pk_add_f32 v[{Z+2*t}:{Z+2*t+1}], v[{Z+2*t}:{Z+2*t+1}], s[20:21]')
        for t in range(7): a(f'v_pk_mul_f32 v[{Z+2*t}:{Z+2*t+1}], v[{Z+2*t}:{Z+2*t+1}], v[{Y+4*t}:{Y+4*t+1}]')
        for j in range(14): a(f'v_exp_f32 v{Z+j}, v{Z+j}')
        for t in range(7): a(f'v_pk_mul_f32 v[{Y+4*t}:{Y+4*t+1}], v[{Y+4*t}:{Y+4*t+1}], v[{Y+4*t+2}:{Y+4*t+3}]')
        for t in range(7): a(f'v_pk_add_f32 v[{Z+2*t}:{Z+2*t+1}], v[{Z+2*t}:{Z+2*t+1}], 1.0 op_sel_hi:[1,0]')
        for j in range(14): a(f'v_rcp_f32 v{Z+j}, v{Z+j}')
        for t in range(7): a(f'v_pk_mul_f32 v[{Y+4*t}:{Y+4*t+1}], v[{Y+4*t}:{Y+4*t+1}], v[{Z+2*t}:{Z+2*t+1}]')
        for t in range(7): a(f'v_cvt_pk_bf16_f32 v{OUT+t}, v{Y+4*t}, v{Y+4*t+1}')
        a(f'buffer_store_dwordx4 v[{OUT}:{OUT+3}], v1, s[4:7], s{17+m} offen sc1')
        for q in range(3): a(f'buffer_store_dword v{OUT+4+q}, v249, s[4:7], s{17+m} offen offset:{1024+256*q} sc1')
    a('s_lshl_b32 s17, s26, 7'); a('s_lshl_b32 s18, s27, 2'); a('s_add_u32 s17, s17, s18'); a(f's_add_u32 s17, s17, {F5}')
    a('s_waitcnt vmcnt(0)'); a('s_barrier')
    set_flags(a, ['s17'], wave=7)
    a.label('L4_skip')
    a.stamp(12)
    PF, PF0, CK, LD = p5
    a('s_mul_i32 s15, s25, 276480'); a('s_add_u32 s15, s15, s9'); a(f's_add_u32 s15, s15, {WD}'); a('s_add_u32 s14, s15, 122880')
    dma7(a, 15, 120)
    a('s_mul_i32 s12, s30, 57344'); a('s_mul_i32 s17, s52, 27648'); a('s_add_u32 s12, s12, s17'); a(f's_add_u32 s12, s12, {ACT}')
    a('s_cmp_eq_u32 s52, 1'); a('s_cbranch_scc1 L5_nox')
    a('s_mul_i32 s17, s25, 2560'); a('s_add_u32 s17, s17, s31'); a(f's_add_u32 s17, s17, {X1}')
    a(f'buffer_load_dwordx4 v[{XR}:{XR+3}], v1, s[4:7], s17 offen sc1'); a(f'buffer_load_dwordx4 v[{XR+4}:{XR+7}], v1, s[4:7], s17 offen offset:1024 sc1')
    a(f'buffer_load_dwordx2 v[{XR+8}:{XR+9}], v248, s[4:7], s17 offen offset:2048 sc1')
    a.label('L5_nox')
    a('s_lshr_b32 s17, s24, 2'); a('s_lshl_b32 s17, s17, 7'); a(f's_add_u32 s17, s17, {F5}')
    a('s_mul_i32 s18, s24, 229376'); a(f's_add_u32 s18, s18, {ACT}')
    poll(a, [('s17', 31)])
    a.stamp(13)
    APOOL = PF + 2
    vA5 = 48; vB5 = max(88, vA5 + APOOL * 4); vacc5 = vB5 + (LD + 1) * 20
    def pro5(extra):
        if t5:
            touch(a, 's18', ['s_lshl_b32 s57, s8, 3', 's_add_u32 s57, s57, s25'], 28); extra(1)
    gemm_main(a, 1, 5, 27, CK, PF, LD, 120, vA5, APOOL, vB5, vacc5, 1, [251, 252], [12], 14, 9, NTD=10, pre_rounds=15, asc='sc1', PF0=PF0, PFB=11, inject={'pro': pro5})
    a.stamp(14)
    G = epi35(False, vacc5, 122880)
    a('s_cmp_eq_u32 s52, 1'); a('s_cbranch_scc1 LM_end')
    resid_epi(vacc5, G)
    a(f'buffer_store_dwordx4 v[{XR}:{XR+3}], v246, s[36:39], s59 offen'); a(f'buffer_store_dwordx4 v[{XR+4}:{XR+7}], v246, s[36:39], s59 offen offset:64')
    a(f'buffer_store_dwordx2 v[{XR+8}:{XR+9}], v247, s[36:39], s59 offen offset:128')
    a.label('LM_end')
    a('s_endpgm')
    return K

HEADER = open('adaLN_cond__linear_kernel_hedgehog__geglu_ffn__prompt.s.ref').read().split('; Override launch')[0]
def emit(kernels, path, order=None):
    order = order or kernels
    out = HEADER
    for k in order:
        out += f'; @launch kernel={k.name} grid=({k.grid},1,1) block=({k.block},1,1) lds={k.lds}\n'
    out += '.amdgcn_target "amdgcn-amd-amdhsa--gfx950"\n.text\n'
    for k in kernels: out += k.text()
    out += '.section .rodata,"a"\n'
    for k in kernels: out += k.desc()
    open(path, 'w').write(out)

def build_all(**kw):
    C.KIDX[0] = 0; _lbl[0] = 0
    return [k1(), mega(**kw)]

if __name__ == '__main__':
    C.INSTR = (len(sys.argv) > 2 and sys.argv[2] == 'i')
    ks = build_all()
    path = sys.argv[1] if len(sys.argv) > 1 else 'adaLN_cond__linear_kernel_hedgehog__geglu_ffn__prompt.s'
    emit(ks, path)
    for k in ks: print(k.name, k.a.max_regs(), 'instrs', sum(1 for l in k.a.lines if not isinstance(l, str)), 'lds', k.lds)
```
